```python
import torch

def _softmax(x, axis=-1):
    return torch.softmax(x, dim=axis)
def _gelu(x):
    return torch.nn.functional.gelu(x, approximate="tanh")
def _silu(x):
    return torch.nn.functional.silu(x)
def _sigmoid(x):
    return torch.sigmoid(x)
def _layernorm(x, axis=-1, eps=1e-5):
    m = x.mean(dim=axis, keepdim=True)
    v = x.var(dim=axis, keepdim=True, unbiased=False)
    return (x - m) / torch.sqrt(v + eps)
def _scatter_add(tgt, idx, src, axis=0):
    return tgt.clone().index_add_(axis, idx, src)
def _segment_sum(src, seg, n):
    out = torch.zeros((n,) + src.shape[1:], dtype=src.dtype)
    return out.index_add_(0, seg, src)
def _pad(x, pw):
    flat = tuple(v for pair in reversed(pw) for v in pair)
    return torch.nn.functional.pad(x, flat)

kernel_name = 'concat_heads__mha_block_cached__mha_block_cached__near_ridge'

def setup_inputs():

    _w = (lambda a: (lambda t: t.to(torch.bfloat16) if t.is_floating_point() else t)(torch.as_tensor(a)))
    def _A_setup():
        B, Sq, D = 8, 304, 448
        H, Sk, Dh = 16, 1024, 256
        return {
            "x": _w((lambda *s: torch.randn(*s, dtype=torch.bfloat16) * 0.8)(B, Sq, D)),
            "k_cache": _w((lambda *s: torch.randn(*s, dtype=torch.bfloat16) * 0.8)(B, H, Sk, Dh)),
            "v_cache": _w((lambda *s: torch.randn(*s, dtype=torch.bfloat16) * 0.05)(B, H, Sk, Dh)),
            "wq": _w((lambda *s: torch.randn(*s, dtype=torch.bfloat16) * 0.8)(D, H * Dh) * (D ** -0.5)),
            "wo": _w((lambda *s: torch.randn(*s, dtype=torch.bfloat16) * 0.05)(H * Dh, D) * ((H * Dh) ** -0.5)),
        }
    _A_in = _A_setup()

    def _B_setup():
        B, Sq, D = 8, 304, 448
        H, Sk, Dh = 16, 1024, 256
        return {
            "x": _w((lambda *s: torch.randn(*s, dtype=torch.bfloat16) * 0.8)(B, Sq, D)),
            "k_cache": _w((lambda *s: torch.randn(*s, dtype=torch.bfloat16) * 0.8)(B, H, Sk, Dh)),
            "v_cache": _w((lambda *s: torch.randn(*s, dtype=torch.bfloat16) * 0.05)(B, H, Sk, Dh)),
            "wq": _w((lambda *s: torch.randn(*s, dtype=torch.bfloat16) * 0.8)(D, H * Dh) * (D ** -0.5)),
            "wo": _w((lambda *s: torch.randn(*s, dtype=torch.bfloat16) * 0.05)(H * Dh, D) * ((H * Dh) ** -0.5)),
        }
    _B_in = _B_setup()

    return {
        "A_x": _A_in["x"],
        "A_k_cache": _A_in["k_cache"],
        "A_v_cache": _A_in["v_cache"],
        "A_wq": _A_in["wq"],
        "A_wo": _A_in["wo"],
        "B_x": _B_in["x"],
        "B_k_cache": _B_in["k_cache"],
        "B_v_cache": _B_in["v_cache"],
        "B_wq": _B_in["wq"],
        "B_wo": _B_in["wo"],
    }

def reference(A_x, A_k_cache, A_v_cache, A_wq, A_wo, B_x, B_k_cache, B_v_cache, B_wq, B_wo):
    def _A_ref(x, k_cache, v_cache, wq, wo):
        B, Sq, D = x.shape
        H, Dh = 16, 256
        q = (lambda x, *d: x.permute(*d))((x @ wq).reshape(B, Sq, H, Dh), 0, 2, 1, 3)
        scores = torch.einsum("bhqd,bhkd->bhqk", q, k_cache) * (Dh ** -0.5)
        p = _softmax(scores, axis=-1)
        o = torch.einsum("bhqk,bhkd->bhqd", p, v_cache)
        return (lambda x, *d: x.permute(*d))(o, 0, 2, 1, 3).reshape(B, Sq, H * Dh) @ wo

    def _B_ref(x, k_cache, v_cache, wq, wo):
        B, Sq, D = x.shape
        H, Dh = 16, 256
        q = (lambda x, *d: x.permute(*d))((x @ wq).reshape(B, Sq, H, Dh), 0, 2, 1, 3)
        scores = torch.einsum("bhqd,bhkd->bhqk", q, k_cache) * (Dh ** -0.5)
        p = _softmax(scores, axis=-1)
        o = torch.einsum("bhqk,bhkd->bhqd", p, v_cache)
        return (lambda x, *d: x.permute(*d))(o, 0, 2, 1, 3).reshape(B, Sq, H * Dh) @ wo

    a = _A_ref(A_x, A_k_cache, A_v_cache, A_wq, A_wo)
    b = _B_ref(B_x, B_k_cache, B_v_cache, B_wq, B_wo)
    return torch.concatenate([a, b], axis=-1)
```

```python
class Reg:
    __slots__ = ('k', 'i', 'n')
    def __init__(s, k, i, n=1): s.k, s.i, s.n = k, i, n
    def __str__(s): return f'{s.k}{s.i}' if s.n == 1 else f'{s.k}[{s.i}:{s.i+s.n-1}]'
    def regs(s): return [(s.k, s.i + x) for x in range(s.n)]
    def sub(s, o, n=1): return Reg(s.k, s.i + o, n)
def V(i, n=1): return Reg('v', i, n)
def A(i, n=1): return Reg('a', i, n)
def S(i, n=1): return Reg('s', i, n)

def _regs(xs):
    out = []
    for x in xs:
        if isinstance(x, Reg): out += x.regs()
        elif isinstance(x, str) and x in ('vcc', 'm0', 'scc', 'exec'): out.append((x, 0))
    return out

class I:
    __slots__ = ('t', 'k', 'rd', 'wr', 'cost', 'meta', 'key')
    def __init__(s, t, k, rd=(), wr=(), cost=4, **meta):
        s.t, s.k, s.rd, s.wr, s.cost, s.meta, s.key = t, k, _regs(rd), _regs(wr), cost, meta, None
    def text(s):
        if s.k == 'wait':
            m = s.meta
            if m.get('drop'): return ''
            if m.get('raw'): return s.t
            parts = []
            if m.get('vm') is not None: parts.append(f"vmcnt({m['vm']})")
            if m.get('lg') is not None: parts.append(f"lgkmcnt({m['lg']})")
            return 's_waitcnt ' + ' '.join(parts)
        return s.t

def mfma(D, Aop, Bop, C):
    c = str(C)
    rd = [Aop, Bop] + ([C] if isinstance(C, Reg) else [])
    return I(f'v_mfma_f32_16x16x32_bf16 {D}, {Aop}, {Bop}, {c}', 'mfma', rd, [D], cost=8, passes=4,
             C=(C if isinstance(C, Reg) else None), D=D)
def mfma32(D, Aop, Bop, C):
    c = str(C)
    rd = [Aop, Bop] + ([C] if isinstance(C, Reg) else [])
    return I(f'v_mfma_f32_32x32x16_bf16 {D}, {Aop}, {Bop}, {c}', 'mfma', rd, [D], cost=8, passes=8,
             C=(C if isinstance(C, Reg) else None), D=D)
def valu(op, dst, *src, extra='', rdx=(), wrx=()):
    t = f'{op} {dst}, ' + ', '.join(str(x) for x in src) + extra
    k = 'trans' if op in ('v_exp_f32', 'v_rcp_f32', 'v_log_f32', 'v_rsq_f32', 'v_sqrt_f32') else 'valu'
    wr = [dst] if isinstance(dst, Reg) or dst in ('vcc',) else []
    rmw = [dst] if op in ('v_fmac_f32',) else []
    return I(t, k, list(src) + rmw + list(rdx), wr + list(wrx), cost=8 if k == 'trans' else 4)
def salu(op, dst, *src, rdx=(), wrx=()):
    ops = [str(dst)] + [str(x) for x in src] if dst is not None else [str(x) for x in src]
    t = f'{op} ' + ', '.join(ops)
    return I(t, 'salu', list(src) + list(rdx), ([dst] if dst is not None else []) + list(wrx))
def ds_read128(dst, addr, off, tag=None):
    return I(f'ds_read_b128 {dst}, {addr} offset:{off}', 'dsr', [addr], [dst], tag=tag)
def ds_readtr(dst, addr, off, tag=None):
    return I(f'ds_read_b64_tr_b16 {dst}, {addr} offset:{off}', 'dsr', [addr], [dst], tag=tag)
def ds_write128(addr, src, off, tag=None):
    return I(f'ds_write_b128 {addr}, {src} offset:{off}', 'dsw', [addr, src], [], tag=tag)
def ds_bperm(dst, addr, src):
    return I(f'ds_bpermute_b32 {dst}, {addr}, {src}', 'dsr', [addr, src], [dst])
def dma(voff, srd, soff, off, nt=False, tag=None, slot=None):
    f = ' nt' if nt else ''
    return I(f'buffer_load_dwordx4 {voff}, {srd}, {soff} offen offset:{off}{f} lds', 'dma',
             [voff, srd, 'm0'] + ([soff] if isinstance(soff, Reg) else []), [], tag=tag, slot=slot)
def wait_lg(*regs):
    return I('', 'wait', lg=None, vm=None, need=_regs(regs), auto=True)
def wait_lg0():
    return I('', 'wait', lg=0, vm=None)
def wait_vm(n):
    return I('', 'wait', lg=None, vm=n)
def barrier():
    return I('s_barrier', 'barrier')
def raw(t, k='salu', rd=(), wr=(), cost=4, **meta):
    return I(t, k, rd, wr, cost, **meta)
def pair(*ins):
    x = I('\n'.join(i.t for i in ins), 'salu', cost=sum(i.cost for i in ins))
    for i in ins: x.rd += i.rd; x.wr += i.wr
    return x
def label(name):
    return I(name + ':', 'label', cost=0)
def nop(n):
    return I(f's_nop {n}', 'nop', cost=4 * (n + 1), n=n)

class F:
    __slots__ = ('ins', 'lo', 'hi', 'deps', 'placed', 'prio')
    def __init__(s, ins, lo, hi, deps=(), prio=0):
        s.ins, s.lo, s.hi, s.deps, s.placed, s.prio = ins, lo, hi, list(deps), None, prio

def weave(mfmas, fillers, pre=(), budget=8, name=''):
    n = len(mfmas)
    out = list(pre)
    todo = list(fillers)
    over = 0
    changed = True
    while changed:
        changed = False
        for f in todo:
            for d in f.deps:
                if d.hi > f.hi: d.hi = f.hi; changed = True
    for f in todo:
        if f.lo > f.hi: f.lo = f.hi
    for g in range(-1, n):
        if g >= 0: out.append(mfmas[g])
        used = 0
        while True:
            cand = [f for f in todo if f.lo <= g and all(d.placed is not None for d in f.deps)]
            if not cand: break
            cand.sort(key=lambda f: (f.hi, -f.prio))
            pick = None
            for f in cand:
                forced = f.hi <= g
                lim = budget if g >= 0 else 10 ** 6
                if g == -1 and not forced: continue
                ok_trans = not (f.ins.k != 'trans' and any(d.ins.k == 'trans' and d.placed == g and out[-1] is d.ins for d in f.deps))
                if not ok_trans and not forced: continue
                if forced or used + f.ins.cost <= lim:
                    pick = f; break
            if pick is None: break
            if any(d.ins.k == 'trans' and out[-1] is d.ins for d in pick.deps) and pick.ins.k != 'trans':
                out.append(nop(0)); used += 4
            if pick.ins.k == 'dma' and ('m0', 0) in out[-1].wr:
                out.append(nop(0)); used += 4
            out.append(pick.ins); pick.placed = g; used += pick.ins.cost
            todo.remove(pick)
        if g >= 0 and used > budget: over += used - budget
        late = [f for f in todo if f.hi <= g]
        assert not late, (name, g, [(f.ins.text(), f.lo, f.hi) for f in late])
    assert not todo, (name, [(f.ins.text(), f.lo, f.hi) for f in todo])
    return out, over

def set_keys(sec, lst):
    for i, x in enumerate(lst): x.key = (sec, i)
    return lst

def resolve_waits(trace):
    best = {}
    needed = set()
    q = []
    for x in trace:
        if x.k in ('dsr', 'dsw'):
            q.append(x)
        elif x.k == 'wait':
            m = x.meta
            if m.get('auto'):
                need = set(m['need'])
                pos = -1
                for i, d in enumerate(q):
                    if need & set(d.wr): pos = i
                nn = min(15, len(q) - 1 - pos) if pos >= 0 else 15
                best[x.key] = min(best.get(x.key, 15), nn)
                if pos >= 0:
                    q = q[pos + 1:]; needed.add(x.key)
            elif m.get('lg') is not None:
                nn = m['lg']; q = q[len(q) - nn:] if nn < len(q) and nn > 0 else ([] if nn == 0 else q)
            elif m.get('raw') and 'lgkmcnt(0)' in x.t:
                q = []
    for x in trace:
        if x.k == 'wait' and x.meta.get('auto'):
            x.meta['lg'] = best[x.key]
            x.meta['drop'] = x.key not in needed
    return best

class Violation(Exception): pass

def check_trace(trace, name=''):
    q = []
    vq = []
    landed = set()
    published = set()
    slot_reads_open = {}
    slot_tile = {}
    errs = []
    hist = []
    def err(i, msg): errs.append(f'{name}[{i}] {trace[i].text()} :: {msg}')
    reads_since_barrier = {}
    pend_slot = {}
    issued = {}
    for i, x in enumerate(trace):
        rd, wr = set(x.rd), set(x.wr)
        if x.k not in ('wait', 'label'):
            for d in q:
                if d.k == 'dsr' and (set(d.wr) & (rd | wr)):
                    err(i, f'touches {set(d.wr) & (rd | wr)} of outstanding {d.text()}')
            for d in vq:
                if d.k == 'vload' and (set(d.wr) & (rd | wr)):
                    err(i, f'touches outstanding vmem load {d.text()}')
        states = 0
        for y in reversed(hist):
            need = 0
            yw, yr = set(y.wr), set(y.rd)
            if x.k == 'mfma':
                if y.k in ('valu', 'trans') and (yw & rd): need = 2
                if y.k == 'mfma':
                    p = y.meta['passes']
                    C = x.meta['C']; Cset = set(C.regs()) if C is not None else set()
                    ab = rd - Cset if C is not None else rd
                    ab = set(x.rd[:8])
                    if yw & ab: need = max(need, {4: 8, 8: 12}[p])
                    if yw & Cset:
                        same = (C.k, C.i, C.n) == (y.meta['D'].k, y.meta['D'].i, y.meta['D'].n) and p == x.meta['passes']
                        if not same: need = max(need, {4: 6, 8: 10}[p])
                    elif (yw & wr) and not (yw & Cset):
                        need = max(need, {4: 6, 8: 10}[p])
            if x.k in ('valu', 'trans', 'dsr', 'dsw', 'dma', 'vload', 'vstore'):
                if y.k == 'mfma':
                    p = y.meta['passes']
                    if yw & (rd | wr): need = max(need, {4: 8, 8: 12}[p])
                    if x.k in ('valu', 'trans') and y.meta['C'] is not None and (set(y.meta['C'].regs()) & wr):
                        need = max(need, {4: 3, 8: 7}[p])
            if x.k == 'valu' and y.k == 'trans' and (yw & rd): need = max(need, 1)
            if x.k in ('valu', 'trans') and y.k in ('valu', 'trans'):
                sg = {r for r in yw if r[0] in ('s', 'vcc')}
                if sg & rd: need = max(need, 2)
                if x.t.startswith('v_readfirstlane') or x.t.startswith('v_readlane'):
                    if yw & rd: need = max(need, 1)
                if x.t.startswith('v_permlane') or 'dpp' in x.t or 'row_' in x.t:
                    if yw & rd: need = max(need, 2)
            if x.k in ('dma', 'vload', 'vstore') and y.k in ('valu', 'trans'):
                if {r for r in yw if r[0] == 's'} & rd: need = max(need, 5)
            if x.k == 'dma' and y.k == 'salu' and ('m0', 0) in yw: need = max(need, 1)
            if x.k in ('valu', 'trans') and y.k == 'vstore' and y.meta.get('wide') and (set(y.meta['data']) & wr): need = max(need, 2)
            if x.k in ('dsr', 'vload', 'mfma') and y.k == 'vstore' and y.meta.get('wide') and (set(y.meta['data']) & wr): need = max(need, 1)
            if need > states: err(i, f'hazard: needs {need} states after {y.text()}, has {states}')
            states += (y.meta['n'] + 1) if y.k == 'nop' else 1
            if states >= 20: break
        if x.k != 'label': hist.append(x)
        if len(hist) > 40: hist = hist[-30:]
        if x.k in ('dsr', 'dsw'):
            q.append(x)
            if len(q) > 15 and False: err(i, 'more than 15 DS ops outstanding')
            tag = x.meta.get('tag')
            if tag is not None:
                slot, tile = tag
                if x.k == 'dsr':
                    if tile not in published: err(i, f'reads unpublished tile {tile}')
                    if slot_tile.get(slot) != tile: err(i, f'slot {slot} holds {slot_tile.get(slot)}, expected {tile}')
                    pend_slot[id(x)] = slot
                    reads_since_barrier[slot] = True
        elif x.k in ('dma', 'vload', 'vstore'):
            vq.append(x)
            if len(vq) > 63: err(i, 'more than 63 VMEM ops outstanding')
            if x.k == 'dma' and x.meta.get('tag') is not None:
                tile, slot = x.meta['tag'], x.meta['slot']
                private = x.meta.get('private', False)
                if slot_tile.get(slot) != tile:
                    for d in q:
                        if pend_slot.get(id(d)) == slot: err(i, f'DMA into slot {slot} with a read outstanding')
                    if reads_since_barrier.get(slot) and not private: err(i, f'DMA into slot {slot} without a barrier after its reads')
                    slot_tile[slot] = tile
                issued[tile] = issued.get(tile, 0) + 1
        elif x.k == 'wait':
            m = x.meta
            lg, vm = m.get('lg'), m.get('vm')
            if m.get('raw'):
                import re
                a_ = re.search(r'lgkmcnt\((\d+)\)', x.t); lg = int(a_.group(1)) if a_ else None
                a_ = re.search(r'vmcnt\((\d+)\)', x.t); vm = int(a_.group(1)) if a_ else None
            if lg is not None and len(q) > lg: q = q[len(q) - lg:] if lg > 0 else []
            if vm is not None and len(vq) > vm:
                done = vq[:len(vq) - vm]; vq = vq[len(vq) - vm:] if vm > 0 else []
                for d in done:
                    if d.k == 'dma' and d.meta.get('tag') is not None:
                        landed.add(d.meta['tag'])
                        if d.meta.get('private') and not any(e.meta.get('tag') == d.meta['tag'] for e in vq if e.k == 'dma'):
                            published.add(d.meta['tag'])
        elif x.k == 'barrier':
            for tile in landed:
                if not any(e.k == 'dma' and e.meta.get('tag') == tile for e in vq): published.add(tile)
            open_slots = {pend_slot[id(d)] for d in q if id(d) in pend_slot}
            for s_ in list(reads_since_barrier):
                if s_ not in open_slots: reads_since_barrier[s_] = False
    return errs

def est_cycles(lst):
    tot = 0; cur = None
    for x in lst:
        if x.k == 'label': continue
        if x.k == 'mfma':
            if cur is not None: tot += max(cur[0], cur[1])
            cur = [16 if x.meta['passes'] == 4 else 32, 8]
        else:
            if cur is None: tot += x.cost
            else: cur[1] += x.cost
    if cur is not None: tot += max(cur[0], cur[1])
    return tot
```

```python
from core import *

LDS_V = [0, 16384]
LDS_K = [32768, 49152, 65536]
LDS_Q = 81920
LDS_W = [16384, 49152, 65536]
LDS_X = 81920
XSLOT = 38912
THR = 0x4e800000
CSCALE = 0x3db8aa3b

sWG = S(2)
sSRD_K, sSRD_V, sSRD_X, sSRD_W, sSRD_O = S(4, 4), S(8, 4), S(12, 4), S(16, 4), S(20, 4)
sC = [S(24), S(25), S(26), 0]
sW = S(27)
sMV = [S(30), S(31)]
sKr = [S(28), S(29), S(35)]
sW4 = S(71)
sCnt = S(32); sInc = S(33); sKoff = S(34)
sKB = S(36, 2)
sThr = S(38); sCs = S(39)
sXoff = S(60); sWr = [S(61), S(62), S(67)]; sXso = S(63); sMX = S(64); sT0 = S(65); sT1 = S(66); sXs = S(68); sXtog = S(70); sT2 = S(69)

class Cfg:
    def __init__(s, r, nt=True):
        s.r = r; s.nt = nt; s.ntw = False
        s.vKA = [V(0), V(1)]; s.vVA = [V(2), V(3), V(4), V(5)]; s.vQA = V(6); s.vD = V(7)
        s.Fq = [V(8 + 4 * i, 4) for i in range(8)]
        s.S = lambda a, j: V(40 + (j * 2 + a) * 4, 4)
        s.P = lambda j: V(80 + 4 * j, 4)
        s.NM = lambda j: V(100 + 4 * j, 4)
        s.L = lambda par, j: V(120 + par * r + j)
        if r == 5:
            s.Rsteps = [0, 1, 7]
            s.Qr = lambda t, j: V(130 + (s.Rsteps.index(t) * 5 + j) * 4, 4)
        else:
            s.Rsteps = list(range(8))
            s.Qr = lambda t, j: V(128 + (t * 4 + j) * 4, 4)
        s.Lsteps = [t for t in range(8) if t not in s.Rsteps]
        s.O = lambda T, j: A((T * 4 + j) * 4, 4) if j < 4 else V(192 + 4 * T, 4)
        s.tmp = [V(190), V(191)] if r == 5 else [V(116), V(117)]
        s.XF = lambda par, j: V(40 + (par * 5 + j) * 4, 4)
        s.vXA = [V(80), V(81)]; s.vXc = [V(82), V(83)]
        s.vWA = [V(84), V(85)]; s.vWc = [[V(86), V(87)], [V(88), V(89)]]
        s.vXD = V(90); s.vWD = V(91)
        s.name = f'r{r}'

EXP = set()
def dma_tile(c, srd, m0src, tile, slot, voff, nt, advance):
    if isinstance(m0src, tuple): o = [salu('s_add_u32', 'm0', m0src[0], m0src[1])]; o[0].wr = [('m0', 0), ('scc', 0)]
    else: o = [salu('s_mov_b32', 'm0', m0src)]; o[0].wr = [('m0', 0)]
    seq = []
    for tp in range(4):
        seq.append(dma(voff, srd, sC[tp], tp * 1024, nt=nt, tag=tile, slot=slot))
    if 'nodma' in EXP and tile[1] >= 2: seq = [nop(0) for _ in seq]
    adv = []
    if advance is not None:
        adv = [pair(salu('s_add_u32', srd.sub(0), srd.sub(0), advance, wrx=['scc']),
                    salu('s_addc_u32', srd.sub(1), srd.sub(1), 0, rdx=['scc'], wrx=['scc']))]
    return o, seq, adv

def chain(instrs, lo, hi, first_dep=None):
    fs = []
    for x in instrs:
        fs.append(F(x, lo, hi, deps=([fs[-1]] if fs else ([first_dep] if first_dep else []))))
    return fs

def m0_then(o, seq, adv, lo, hi, dep=None):
    ins = o + [nop_free()] + seq + adv
    return chain(ins, lo, hi, dep)

def spread(o, seq, adv, gaps, dep=None, slack=2):
    fs = [F(o[0], gaps[0] - 2, gaps[0] - 1, deps=[dep] if dep else [], prio=4)]
    for x, g in zip(seq, gaps):
        fs.append(F(x, g, g + slack, deps=[fs[-1]], prio=4))
    for x in adv: fs.append(F(x, gaps[-1], gaps[-1] + slack + 2, deps=[fs[-1]]))
    return fs

def rotate3(regs, tmp):
    return [salu('s_mov_b32', tmp, regs[0]), salu('s_mov_b32', regs[0], regs[1]),
            salu('s_mov_b32', regs[1], regs[2]), salu('s_mov_b32', regs[2], tmp)]

def nop_free():
    return nop(0)

def k_reads(c, p, step):
    out = []
    for a in range(2):
        buf = c.Fq[2 * (step & 1) + a]
        out.append(ds_read128(buf, c.vKA[step & 1], a * 8192 + (step >> 1) * 1024, tag=(f'K{p%3}', ('K', p))))
    return out

def v_reads(c, pv, k, groups):
    slot = LDS_V[pv & 1]
    out = []
    for x in range(2):
        T = 2 * k + x
        buf = c.Fq[groups[k % 3][x]]
        for s_ in range(2):
            out.append(ds_readtr(buf.sub(2 * s_, 2), c.vVA[T & 3], slot + s_ * 8192 + (T >> 2) * 1024, tag=(f'V{pv&1}', ('V', pv))))
    return out

GV = [(4, 5), (6, 7), (2, 3)]
GV_FINAL = [(0, 1), (2, 3), (4, 5)]

def cvts(c, j):
    P = c.P(j)
    return [valu('v_cvt_pk_bf16_f32', P.sub(0), c.S(0, j).sub(0), c.S(0, j).sub(1)),
            valu('v_cvt_pk_bf16_f32', P.sub(1), c.S(0, j).sub(2), c.S(0, j).sub(3)),
            valu('v_cvt_pk_bf16_f32', P.sub(2), c.S(1, j).sub(0), c.S(1, j).sub(1)),
            valu('v_cvt_pk_bf16_f32', P.sub(3), c.S(1, j).sub(2), c.S(1, j).sub(3))]

def qk_phase(c, p, first=False, issue_v=True, issue_k=True, kadv=None, vm_a=12, pre_v=True):
    r = c.r
    n1 = 2 * r
    mf = []
    qbuf = {}
    nL = 0
    for t in range(8):
        for j in range(r):
            if t in c.Rsteps: B = c.Qr(t, j)
            else:
                B = c.Fq[4 + nL % 4]; qbuf[(t, j)] = (nL, B); nL += 1
            for a in range(2):
                C = c.NM(j) if t == 0 else c.S(a, j)
                mf.append(mfma(c.S(a, j), c.Fq[2 * (t & 1) + a], B, C))
    idx = lambda t, j, a: t * n1 + 2 * j + a
    fl = []
    if not first:
        for j in range(1, r):
            cv = cvts(c, j)
            for x in cv: fl.append(F(x, max(0, idx(0, j, 0) - 3), idx(0, j, 0) - 1, prio=5))
    fl.append(F(wait_lg(c.Fq[0], c.Fq[1]), -1, -1, prio=9))
    kw = {}
    for t in range(1, 8):
        kw[t] = F(wait_lg(c.Fq[2 * (t & 1)], c.Fq[2 * (t & 1) + 1]), idx(t, 0, 0) - 1, idx(t, 0, 0) - 1, prio=9)
    kr = {}
    for t in range(2, 8):
        lo = idx(t - 1, 0, 0) - 1 if t > 2 else idx(1, 0, 0) - 1
        lo = idx(t - 2, r - 1, 1)
        rs = k_reads(c, p, t)
        kr[t] = [F(rs[0], lo, lo + 2, prio=4), F(rs[1], lo, lo + 3, prio=4)]
        fl += kr[t]
        kw[t].deps += kr[t]
    qr = {}
    lst = sorted(qbuf.items(), key=lambda kv: kv[1][0])
    for (t, j), (n, B) in lst:
        ins = ds_read128(B, c.vQA, n * 1024)
        if n < 4: lo, hi = idx(1, 0, 0), idx(1, 0, 0) + 2 + n
        else:
            (t0, j0) = lst[n - 4][0]
            lo = idx(t0, j0, 1); hi = lo + 1
        qr[n] = F(ins, lo, hi, prio=6)
        fl.append(qr[n])
        w = F(wait_lg(B), idx(t, j, 0) - 1, idx(t, j, 0) - 1, deps=[qr[n]], prio=8)
        if j == 0:
            kw[t].ins.meta['need'] += B.regs(); kw[t].deps.append(qr[n])
        else: fl.append(w)
    for t in range(1, 8): fl.append(kw[t])
    g_lo, g_hi = idx(1, 0, 0) + 2, idx(7, 0, 0) - 4
    ng = (4 if issue_v else 0) + (4 if issue_k else 0)
    gaps = [g_lo + (k * (g_hi - g_lo)) // max(1, ng - 1) for k in range(ng)]
    lastf = None
    fl.append(F(salu('s_add_u32', sKoff, sKoff, 16384, wrx=['scc']), idx(1, 0, 0), idx(1, 0, 0) + 6) if issue_v else F(nop(0), 0, idx(1,0,0)+6))
    if issue_v:
        o, seq, adv = dma_tile(c, sSRD_V, sMV[p & 1], ('V', p), f'V{p&1}', c.vD, c.nt, 16384)
        fs = spread(o, seq, adv, gaps[:4]); fl += fs; lastf = fs[4]; gaps = gaps[4:]
    if issue_k:
        tile = ('K', p + 2) if p + 2 <= 31 else ('Kdummy', p)
        o, seq, adv = dma_tile(c, sSRD_K, (sKr[2], sW4), tile, f'K{(p+2)%3}', c.vD, c.nt, kadv)
        fs = spread(o, seq, adv, gaps, lastf); fl += fs; lastk = fs[0]
    rot = [salu('s_sub_u32', sT2, sKr[1], sKr[0], wrx=['scc']),
           valu('v_add_u32', c.vKA[0], sT2, c.vKA[0]), valu('v_add_u32', c.vKA[1], sT2, c.vKA[1])] + rotate3(sKr, sT0)
    fl += chain(rot, idx(6, 0, 0), idx(7, 0, 0) + 2, None)
    fl[-len(rot)].deps += kr[7] + kr[6] + ([lastk] if issue_k else [])
    g7 = idx(7, 0, 0) - 1
    fa = F(wait_vm(vm_a), g7, g7, deps=[kw[7]], prio=7)
    fb = F(barrier(), g7, g7, deps=[fa], prio=7)
    fl += [fa, fb]
    last = idx(7, r - 1, 1)
    if pre_v:
        for k in range(2):
            for n, x in enumerate(v_reads(c, p - 1, k, GV)):
                fl.append(F(x, g7, min(last, g7 + 2 + 2 * k + n // 2), deps=[fb], prio=6 - k))
    out, over = weave(mf, fl, name=f'qk{p}')
    return out

def sm_fillers(c, p, n_gaps):
    r = c.r
    fl = []; exps = []; adds = []
    Ln, Lo = (lambda j: c.L(p & 1, j)), (lambda j: c.L((p - 1) & 1, j))
    order = [(j, a, e) for j in range(r) for a in range(2) for e in range(4)]
    ne = len(order)
    span = n_gaps - 8
    prev = {}
    for n, (j, a, e) in enumerate(order):
        x = c.S(a, j).sub(e)
        lo = (n * span) // ne
        fe = F(valu('v_exp_f32', x, x), max(0, lo), lo + 3, prio=3)
        first = (a == 0 and e == 0)
        fa = F(valu('v_add_f32', Ln(j), Lo(j) if first else Ln(j), x), lo, lo + 6,
               deps=[fe] + ([prev[j]] if j in prev else []), prio=2)
        prev[j] = fa
        exps.append(fe); adds.append(fa)
    return exps, adds, [prev[j] for j in range(r)]

def pv_phase(c, pv, sm=None, groups=GV, bar_b=None, k_next=None, sp_label=None, final=False, v_next=None, zero_c=False):
    r = c.r
    mf = []
    for T in range(16):
        buf = c.Fq[groups[(T >> 1) % 3][T & 1]]
        for j in range(r):
            mf.append(mfma(c.O(T, j), buf, c.P(j), c.O(T, j)))
    n = len(mf)
    pstart = lambda k: 2 * k * r
    fl = []
    waits = {}
    for k in range(8):
        g = pstart(k) - 1
        bufs = [c.Fq[x] for x in groups[k % 3]]
        waits[k] = F(wait_lg(*bufs), g, g, prio=9)
    for k in range(2, 8):
        lo = pstart(k - 2)
        for m, x in enumerate(v_reads(c, pv, k, groups)):
            f = F(x, lo, lo + 2 + (m * (2 * r - 6)) // 4 + (1 if r == 4 else 0), prio=5)
            fl.append(f); waits[k].deps.append(f)
    fl += list(waits.values())
    if final:
        for j in range(1, r):
            for x in cvts(c, j): fl.append(F(x, -1, max(-1, j - 2), prio=8))
    g7 = pstart(7) - 1
    dep = waits[7]
    if bar_b is not None:
        fa = F(wait_vm(bar_b), g7, g7, deps=[waits[7]], prio=7)
        fb = F(barrier(), g7, g7, deps=[fa], prio=7)
        fl += [fa, fb]; dep = fb
    if k_next is not None:
        for st in range(2):
            for m, x in enumerate(k_reads(c, k_next, st)):
                fl.append(F(x, g7, g7 + 1 + 2 * st + m, deps=[dep], prio=6))
    if v_next is not None:
        for k in range(2):
            for m, x in enumerate(v_reads(c, v_next, k, GV_FINAL)):
                fl.append(F(x, g7, g7 + 1 + 2 * k + m // 2, deps=[dep], prio=6))
    if sm is not None:
        exps, adds, lastadd = sm_fillers(c, sm, n)
        fl += exps + adds
        Ln = lambda j: c.L(sm & 1, j)
        t0 = c.tmp[0]
        m1 = F(valu('v_max3_f32', t0, Ln(0), Ln(1), Ln(2)), n - 6, n - 2, deps=lastadd[:3], prio=1)
        if r == 5: m2 = F(valu('v_max3_f32', t0, t0, Ln(3), Ln(4)), n - 6, n - 1, deps=[m1] + lastadd, prio=1)
        else: m2 = F(valu('v_max_f32', t0, t0, Ln(3)), n - 6, n - 1, deps=[m1] + lastadd, prio=1)
        cmp_ = F(valu('v_cmp_nle_f32', 'vcc', t0, sThr, extra=''), n - 5, n - 1, deps=[m2], prio=1)
        cmp_.ins.t = f'v_cmp_nge_f32 vcc, {sThr}, {t0}'
        cv = [F(x, n - r, n - 1, deps=[f for f in exps[:8]] + adds[:8], prio=1) for x in cvts(c, 0)]
        br = F(raw(f's_cbranch_vccnz {sp_label}', 'branch', rd=['vcc']), n - 1, n - 1, deps=[cmp_] + cv + lastadd, prio=0)
        fl += [m1, m2, cmp_] + cv + [br]
    out, over = weave(mf, fl, name=f'pv{pv}')
    if sm is not None:
        out.append(label(sp_label + '_ret'))
    return out

def xlane(c, regs, tmps, op):
    o = []
    a16, a32 = c.tmp
    o.append(valu('v_mbcnt_lo_u32_b32', a16, -1, 0))
    o.append(valu('v_mbcnt_hi_u32_b32', a16, -1, a16))
    o.append(valu('v_xor_b32', a32, 32, a16))
    o.append(valu('v_xor_b32', a16, 16, a16))
    o.append(valu('v_lshlrev_b32', a32, 2, a32))
    o.append(valu('v_lshlrev_b32', a16, 2, a16))
    for ad in (a16, a32):
        for x, t in zip(regs, tmps): o.append(ds_bperm(t, ad, x))
        o.append(wait_lg0())
        for x, t in zip(regs, tmps): o.append(valu(op, x, x, t))
    return o

def rowmax(c, mx):
    o = []
    for j in range(c.r):
        s0, s1 = c.S(0, j), c.S(1, j)
        o.append(valu('v_max3_f32', mx[j], s0.sub(0), s0.sub(1), s0.sub(2)))
        o.append(valu('v_max3_f32', mx[j], mx[j], s0.sub(3), s1.sub(0)))
        o.append(valu('v_max3_f32', mx[j], mx[j], s1.sub(1), s1.sub(2)))
        o.append(valu('v_max_f32', mx[j], mx[j], s1.sub(3)))
    return o

def exp_block(c, p, mx, have_old):
    o = []
    for j in range(c.r):
        for a in range(2):
            for e in range(4):
                x = c.S(a, j).sub(e); o.append(valu('v_sub_f32', x, x, mx[j]))
    for j in range(c.r):
        for a in range(2):
            for e in range(4):
                x = c.S(a, j).sub(e); o.append(valu('v_exp_f32', x, x))
    o.append(nop(0))
    for j in range(c.r):
        Ln = c.L(p & 1, j)
        n = 0
        for a in range(2):
            for e in range(4):
                x = c.S(a, j).sub(e)
                if n == 0:
                    if have_old: o.append(valu('v_add_f32', Ln, c.L((p - 1) & 1, j), x))
                    else: o.append(valu('v_mov_b32', Ln, x))
                else: o.append(valu('v_add_f32', Ln, Ln, x))
                n += 1
    o += cvts(c, 0)
    return o

def init_softmax(c):
    r = c.r
    mx = [V(84 + j) for j in range(r)]; tm = [V(90 + j) for j in range(r)]
    o = [nop(7)]
    o += rowmax(c, mx)
    o += xlane(c, mx, tm, 'v_max_f32')
    for j in range(r):
        for e in range(4): o.append(valu('v_sub_f32', c.NM(j).sub(e), 0, mx[j]))
    o += exp_block(c, 0, mx, False)
    return o

def slow_path(c, p, name):
    r = c.r
    o = [label(name), wait_lg0(), nop(7), nop(7)]
    vo = c.tmp[0]; vl = c.tmp[1]
    o.append(valu('v_mbcnt_lo_u32_b32', vl, -1, 0))
    o.append(valu('v_mbcnt_hi_u32_b32', vl, -1, vl))
    o.append(valu('v_and_b32', vo, 15, vl))
    o.append(valu('v_lshlrev_b32', vo, 9, vo))
    o.append(valu('v_lshrrev_b32', vl, 4, vl))
    o.append(valu('v_lshlrev_b32', vl, 4, vl))
    o.append(valu('v_add_u32', vo, vo, vl))
    o.append(valu('v_add_u32', vo, sKoff, vo))
    for t in range(8):
        for a in range(2):
            if a == 1: o.append(valu('v_add_u32', vl, 8192, vo))
            ad = vo if a == 0 else vl
            o.append(I(f'global_load_dwordx4 {c.Fq[4+a]}, {ad}, {sKB} offset:{64*t}', 'vload', [ad, sKB], [c.Fq[4 + a]]))
        if t in c.Lsteps:
            nb = c.Lsteps.index(t) * r
        o.append(wait_vm(0))
        for j in range(r):
            if t in c.Rsteps: B = c.Qr(t, j)
            else:
                B = c.Fq[6]
                o.append(ds_read128(B, c.vQA, (nb + j) * 1024)); o.append(wait_lg0())
            for a in range(2):
                C = c.NM(j) if t == 0 else c.S(a, j)
                o.append(mfma(c.S(a, j), c.Fq[4 + a], B, C))
            if t not in c.Rsteps: o.append(nop(7))
        o.append(nop(7))
    o += [nop(7)]
    mx = [V(84 + j) for j in range(r)]; tm = [V(90 + j) for j in range(r)]
    o += rowmax(c, mx)
    o += xlane(c, mx, tm, 'v_max_f32')
    for j in range(r): o.append(valu('v_max_f32', mx[j], 0, mx[j]))
    for j in range(r): o.append(valu('v_sub_f32', tm[j], 0, mx[j]))
    for j in range(r): o.append(valu('v_exp_f32', tm[j], tm[j]))
    o.append(nop(0))
    for j in range(r):
        for e in range(4): o.append(valu('v_sub_f32', c.NM(j).sub(e), c.NM(j).sub(e), mx[j]))
        Lo = c.L((p - 1) & 1, j)
        o.append(valu('v_mul_f32', Lo, Lo, tm[j]))
        for T in range(16):
            O = c.O(T, j)
            for e in range(4):
                if O.k == 'a':
                    o.append(valu('v_accvgpr_read_b32', vo, O.sub(e)))
                    o.append(valu('v_mul_f32', vo, vo, tm[j]))
                    o.append(valu('v_accvgpr_write_b32', O.sub(e), vo))
                else: o.append(valu('v_mul_f32', O.sub(e), O.sub(e), tm[j]))
    o += exp_block(c, p, mx, True)
    o.append(nop(1))
    o.append(raw(f's_branch {name}_ret', 'branch'))
    return o

def x_dma(c, sigma):
    nb = 2 * c.r
    o = [salu('s_mov_b32', 'm0', sMX), salu('s_mov_b32', sXso, sXs)]
    o[0].wr = [('m0', 0)]
    for b in range(nb):
        d = dma(c.vXD, sSRD_X, sXso, 0, tag=('X', sigma), slot=f'X{sigma&1}'); d.meta['private'] = True
        o.append(d)
        if b < nb - 1:
            x = salu('s_add_u32', 'm0', 'm0', 1024, wrx=['scc']); x.wr = [('m0', 0), ('scc', 0)]; o.append(x)
            o.append(salu('s_add_u32', sXso, sXso, 7168, wrx=['scc']))
    o.append(salu('s_add_u32', sXs, sXs, 128, wrx=['scc']))
    o.append(salu('s_xor_b32', sMX, sMX, sXtog, wrx=['scc']))
    return o

def w_dma(c, kappa, slotreg):
    o = [salu('s_add_u32', 'm0', slotreg, sW4)]; o[0].wr = [('m0', 0), ('scc', 0)]
    seq = [dma(c.vWD, sSRD_W, sC[tp], tp * 1024, nt=c.ntw, tag=('W', kappa), slot=f'W{kappa%3}') for tp in range(4)]
    adv = [pair(salu('s_add_u32', sSRD_W.sub(0), sSRD_W.sub(0), 262144, wrx=['scc']),
                salu('s_addc_u32', sSRD_W.sub(1), sSRD_W.sub(1), 0, rdx=['scc'], wrx=['scc']))]
    return o, seq, adv

def w_reads(c, kappa, t):
    par = kappa & 1
    out = []
    for s_ in range(2):
        buf = c.Fq[2 * (t % 4) + s_]
        for u in range(2):
            out.append(ds_readtr(buf.sub(2 * u, 2), c.vWc[par][t & 1], u * 8192 + (t >> 1) * 1024 + 8 * s_, tag=(f'W{kappa%3}', ('W', kappa))))
    return out

def x_reads(c, kappa):
    par = kappa & 1
    return [ds_read128(c.XF(par, j), c.vXc[par], j * 2048, tag=(f'X{(kappa>>1)&1}', ('X', kappa >> 1))) for j in range(c.r)]

def next_addr(c, kappa, slotreg):
    par = kappa & 1
    o = [valu('v_add_u32', c.vWc[par][0], slotreg, c.vWA[0]), valu('v_add_u32', c.vWc[par][1], slotreg, c.vWA[1])]
    if par == 0:
        o.append(valu('v_add_u32', c.vXc[0], sXoff, c.vXA[0]))
        o.append(valu('v_add_u32', c.vXc[1], sXoff, c.vXA[1]))
        o.append(salu('s_xor_b32', sXoff, sXoff, XSLOT, wrx=['scc']))
    return o

def qproj_step(c, kappa):
    r = c.r
    par = kappa & 1
    mf = []
    for T in range(16):
        buf = c.Fq[2 * ((T >> 1) % 4) + (T & 1)]
        for j in range(r): mf.append(mfma(c.O(T, j), buf, c.XF(par, j), c.O(T, j)))
    n = len(mf); ps = lambda k: 2 * k * r
    fl = []; waits = {}
    for k in range(8):
        g = ps(k) - 1
        regs = [c.Fq[2 * (k % 4)], c.Fq[2 * (k % 4) + 1]]
        if k == 0: regs += [c.XF(par, j) for j in range(r)]
        waits[k] = F(wait_lg(*regs), g, g, prio=9)
    for k in range(2, 8):
        lo = ps(k - 2)
        for m, x in enumerate(w_reads(c, kappa, k)):
            f = F(x, lo, lo + 1 + m, prio=5); fl.append(f); waits[k].deps.append(f)
    fl += list(waits.values())
    nb = 2 * r
    newer = 0
    lastd = None
    has_x = par == 0 and (kappa >> 1) + 1 <= 6
    ndma = 4 + (nb if has_x else 0)
    g0, g1 = 3, ps(6) - 2
    gaps = [g0 + (k * (g1 - g0)) // (ndma - 1) for k in range(ndma)]
    if kappa + 2 <= 13: o, sq, adv = w_dma(c, kappa + 2, sWr[2])
    elif kappa == 12: o, sq, adv = dma_tile(c, sSRD_K, (sKr[0], sW4), ('K', 0), 'K0', c.vD, c.nt, 16384)
    else: o, sq, adv = dma_tile(c, sSRD_V, sMV[0], ('V', 0), 'V0', c.vD, c.nt, 16384)
    fs = spread(o, sq, adv, gaps[:4]); fl += fs; newer = 4; lastd = fs[4]; m0w = fs[0]
    if has_x:
        xs = x_dma(c, (kappa >> 1) + 1)
        prev = lastd; k = 4
        for x in xs:
            if x.k == 'dma': f = F(x, gaps[k], gaps[k] + 2, deps=[prev], prio=4); k += 1
            else:
                gk = gaps[min(k, ndma - 1)]
                f = F(x, gk - 3, gk + 1, deps=[prev], prio=3)
            fl.append(f); prev = f
        newer += nb; lastd = prev
    g7 = ps(7) - 1
    if kappa < 13:
        na = chain(next_addr(c, kappa + 1, sWr[1]), ps(4), ps(6) + 2)
        fl += na
        rt = chain(rotate3(sWr, sT0), ps(6) + 3, ps(7) + 6, na[-1]); rt[0].deps.append(m0w); fl += rt
        vm = newer if par == 0 else (4 if kappa < 13 else 0)
        fa = F(wait_vm(vm), g7, g7, deps=[waits[7]], prio=7)
        fb = F(barrier(), g7, g7, deps=[fa], prio=7)
        fl += [fa, fb]
        for k in range(2):
            for m, x in enumerate(w_reads(c, kappa + 1, k)):
                fl.append(F(x, g7, g7 + 1 + 2 * k + m // 2, deps=[fb, na[-1]], prio=6))
        for m, x in enumerate(x_reads(c, kappa + 1)):
            fl.append(F(x, g7, min(n - 2, g7 + 4 + m), deps=[fb, na[-1]], prio=4))
    else:
        fb = F(barrier(), g7, g7, deps=[waits[7]], prio=7)
        fl.append(fb)
        o, sq, adv = dma_tile(c, sSRD_K, (sKr[1], sW4), ('K', 1), 'K1', c.vD, c.nt, 16384)
        fl += chain(o + [nop(0)] + sq + adv, g7, n - 1, fb)
    out, over = weave(mf, fl, name=f'qp{kappa}')
    return out

def q_convert(c):
    r = c.r
    o = [nop(7)]
    for j in range(r):
        for e in range(4): o.append(valu('v_mov_b32', c.NM(j).sub(e), 0))
    Z = c.NM(0)
    tq = [V(40 + i) for i in range(8)]
    tf = [V(48, 4), V(52, 4)]
    nw = 0
    for t in range(8):
        for j in range(r):
            for s_ in range(2):
                O = c.O(2 * t + s_, j)
                for e in range(4):
                    if O.k == 'a':
                        o.append(valu('v_accvgpr_read_b32', tq[4 * s_ + e], O.sub(e)))
                for e in range(4):
                    src = tq[4 * s_ + e] if O.k == 'a' else O.sub(e)
                    o.append(valu('v_mul_f32', tq[4 * s_ + e], sCs, src))
            dst = c.Qr(t, j) if t in c.Rsteps else tf[nw & 1]
            for e in range(4): o.append(valu('v_cvt_pk_bf16_f32', dst.sub(e), tq[2 * e], tq[2 * e + 1]))
            if t not in c.Rsteps:
                n = c.Lsteps.index(t) * r + j
                o.append(ds_write128(c.vQA, dst, n * 1024)); nw += 1
        for s_ in range(2):
            T = 2 * t + s_
            o.append(mfma32(A(T * 16, 16), Z, Z, 0))
        if r == 5 and (t & 1):
            o.append(mfma32(V(192 + 16 * (t >> 1), 16), Z, Z, 0))
    o.append(wait_lg0())
    return o

def epilogue(c):
    r = c.r
    par = 31 & 1
    Ls = [c.L(par, j) for j in range(r)]
    tm = [V(40 + j) for j in range(r)]
    o = [nop(7)]
    o += xlane(c, Ls, tm, 'v_add_f32')
    for j in range(r): o.append(valu('v_rcp_f32', Ls[j], Ls[j]))
    vo = c.tmp[0]
    o.append(valu('v_mbcnt_lo_u32_b32', vo, -1, 0))
    o.append(valu('v_mbcnt_hi_u32_b32', vo, -1, vo))
    o.append(valu('v_lshlrev_b32', vo, 4, vo))
    o.append(salu('s_mul_i32', sT0, sW, 5 * 8192))
    o.append(valu('v_add_u32', vo, sT0, vo))
    tq = [V(48 + i) for i in range(8)]
    fr = [V(56 + 4 * i, 4) for i in range(4)]
    n = 0
    for j in range(r):
        for tp in range(8):
            for s_ in range(2):
                O = c.O(2 * tp + s_, j)
                for e in range(4):
                    if O.k == 'a': o.append(valu('v_accvgpr_read_b32', tq[4 * s_ + e], O.sub(e)))
                for e in range(4):
                    src = tq[4 * s_ + e] if O.k == 'a' else O.sub(e)
                    o.append(valu('v_mul_f32', tq[4 * s_ + e], Ls[j], src))
            dst = fr[n % 4]; n += 1
            for e in range(4): o.append(valu('v_cvt_pk_bf16_f32', dst.sub(e), tq[2 * e], tq[2 * e + 1]))
            if (tp & 3) == 0: o.append(salu('s_mov_b32', sT1, j * 8192 + (tp >> 2) * 4096))
            o.append(I(f'buffer_store_dwordx4 {dst}, {vo}, {sSRD_O}, {sT1} offen offset:{(tp&3)*1024}', 'vstore',
                       [dst, vo, sSRD_O, sT1], [], wide=True, data=dst.regs()))
    return o

STAMPS = False
NOCHECK = False
def stamp(n, real=False):
    if not STAMPS: return []
    op = 's_memrealtime' if real else 's_memtime'
    return [raw(f'{op} s[82:83]'), I('s_waitcnt lgkmcnt(0)', 'wait', raw=True), raw(f's_mov_b32 s{84+n}, s82')]
def stamp_store(c):
    if not STAMPS: return []
    o = [raw('s_load_dwordx2 s[82:83], s[0:1], 96'), I('s_waitcnt lgkmcnt(0)', 'wait', raw=True)]
    o.append(raw('s_lshl_b32 s65, s2, 2')); o.append(raw('s_add_u32 s65, s65, s27')); o.append(raw('s_lshl_b32 s65, s65, 6'))
    o.append(raw('s_add_u32 s65, s65, 0x3000000'))
    o.append(raw('s_add_u32 s82, s82, s65')); o.append(raw('s_addc_u32 s83, s83, 0'))
    o.append(raw('v_mov_b32 v8, 0', 'valu'))
    for n in range(16):
        o.append(raw(f'v_mov_b32 v{12+n}, s{84+n}', 'valu'))
    for n in range(4):
        o.append(raw(f'global_store_dwordx4 v8, v[{12+4*n}:{15+4*n}], s[82:83] offset:{16*n}', 'vstore'))
    return o

def build_variant(c):
    nm = c.name
    prog = []; trace = []
    def sec(name, ins, emit=True):
        set_keys(name, ins)
        trace.extend(ins)
        if emit: prog.extend(ins)
        return ins
    r = c.r
    pre = stamp(0, True) + stamp(1)
    pre += x_dma(c, 0)
    for kk in range(2):
        o_, sq_, adv_ = w_dma(c, kk, sWr[kk]); pre += o_ + [nop(0)] + sq_ + adv_
    for T in range(16):
        for j in range(r):
            O = c.O(T, j)
            for e in range(4):
                pre.append(valu('v_accvgpr_write_b32', O.sub(e), 0) if O.k == 'a' else valu('v_mov_b32', O.sub(e), 0))
    pre += next_addr(c, 0, sWr[0])
    pre += [wait_vm(4), barrier()]
    pre += stamp(2)
    pre += w_reads(c, 0, 0) + w_reads(c, 0, 1) + x_reads(c, 0)
    pre.append(salu('s_mov_b32', sCnt, 6))
    sec('pre', pre)
    lq = f'L_qp_{nm}'
    for sg in range(6):
        body = []
        if sg == 0: body.append(label(lq))
        body += qproj_step(c, 2 * sg) + qproj_step(c, 2 * sg + 1)
        body += [salu('s_sub_u32', sCnt, sCnt, 1, wrx=['scc']), salu('s_cmp_lg_u32', None, sCnt, 0, wrx=['scc']),
                 raw(f's_cbranch_scc1 {lq}', 'branch')]
        if sg != 0: body.insert(0, label(lq))
        sec('qploop', body, emit=(sg == 0))
    sec('qp6', qproj_step(c, 12) + qproj_step(c, 13))
    sec('conv', stamp(3) + q_convert(c) + stamp(4))
    p0 = [wait_vm(8), barrier()] + k_reads(c, 0, 0) + k_reads(c, 0, 1)
    p0 += qk_phase(c, 0, first=True, issue_v=False, issue_k=True, kadv=16384, vm_a=8, pre_v=False)
    p0 += stamp(5) + init_softmax(c) + stamp(6)
    p0 += [wait_vm(4), barrier()] + k_reads(c, 1, 0) + k_reads(c, 1, 1)
    p0 += [salu('s_mov_b32', sCnt, 15), salu('s_mov_b32', sKoff, 0)]
    sec('p0', p0)
    la = f'L_att_{nm}'
    for trip in range(15):
        p = 1 + 2 * trip
        body = [label(la)]
        body += [salu('s_cmp_eq_u32', None, sCnt, 1, wrx=['scc']), salu('s_cselect_b32', sInc, 0, 16384, rdx=['scc'])]
        body += qk_phase(c, p, kadv=sInc)
        body += pv_phase(c, p - 1, sm=p, bar_b=8, k_next=p + 1, sp_label=f'L_sp1_{nm}')
        body += qk_phase(c, p + 1, kadv=16384 if False else sInc)
        body += pv_phase(c, p, sm=p + 1, bar_b=8, k_next=p + 2, sp_label=f'L_sp0_{nm}')
        body += [salu('s_sub_u32', sCnt, sCnt, 1, wrx=['scc']), salu('s_cmp_lg_u32', None, sCnt, 0, wrx=['scc']),
                 raw(f's_cbranch_scc1 {la}', 'branch')]
        sec('attloop', body, emit=(trip == 0))
    tail = stamp(7) + qk_phase(c, 31, issue_k=False, vm_a=8)
    tail += pv_phase(c, 30, sm=31, bar_b=0, v_next=31, sp_label=f'L_sp2_{nm}')
    tail += pv_phase(c, 31, groups=GV_FINAL, final=True)
    sec('tail', tail)
    sec('epi', stamp(8) + epilogue(c) + stamp(9) + [wait_vm(0)] + stamp(10) + stamp(11, True) + stamp_store(c))
    prog.append(raw('s_endpgm', 'branch'))
    if 'nobar' in EXP:
        for x in trace:
            if x.k == 'barrier' and x.key[0] == 'attloop': x.t = 's_nop 0'
    resolve_waits(trace)
    errs = check_trace(trace, nm) if not EXP else []
    sps = []
    for name, p in ((f'L_sp1_{nm}', 1), (f'L_sp0_{nm}', 2), (f'L_sp2_{nm}', 31)):
        sp = slow_path(c, p, name)
        set_keys(name, sp)
        errs += check_trace(sp, name)
        sps += sp
    return prog + sps, trace, errs
```

```python
from core import *

NS = 4
WSLOT = 7168
sSRD_O, sSRD_W, sSRD_Y = S(4, 4), S(8, 4), S(12, 4)
sW = S(16); sM0 = S(17); sOo = S(18); sWo = S(19); sCnt = S(20); sT0 = S(21); sT1 = S(22); sKs = S(23); sBig = S(24)

class Cfg2:
    def __init__(s, rm, ntw=False, nto=False):
        s.rm = rm; s.name = f'm{rm}'; s.ntw = ntw; s.nto = nto
        s.vO = [V(0 + j) for j in range(5)]
        s.vW = [V(5 + b) for b in range(7)]
        s.vA = V(12)
        s.OF = lambda st, j: V(16 + (st * 5 + j) * 4, 4)
        s.WF = lambda par, nu: V(96 + (par * 7 + nu) * 4, 4)
        s.acc = lambda j, nu: A((j * 7 + nu) * 4, 4)
        s.tmp = [V(152 + i) for i in range(24)]

def group_issue(c, ks):
    slot = ks % NS
    o = []
    m = salu('s_add_u32', 'm0', sM0, slot * WSLOT); m.wr = [('m0', 0), ('scc', 0)]
    o.append(m)
    for b in range(7):
        if b == 4:
            m = salu('s_add_u32', 'm0', sM0, slot * WSLOT + 4096); m.wr = [('m0', 0), ('scc', 0)]; o.append(m)
        d = dma(c.vW[b], sSRD_W, sWo, (b & 3) * 1024, nt=c.ntw, tag=('W', ks), slot=f'W{slot}'); d.meta['private'] = True
        o.append(d)
    for j in range(c.rm):
        dst = c.OF(ks % 4, j)
        f = ' nt' if c.nto else ''
        o.append(I(f'buffer_load_dwordx4 {dst}, {c.vO[j]}, {sSRD_O}, {sOo} offen{f}', 'vload', [c.vO[j], sSRD_O, sOo], [dst]))
    o.append(salu('s_add_u32', sWo, sWo, 32 * 896, wrx=['scc']))
    o.append(salu('s_add_u32', sKs, sKs, 1, wrx=['scc']))
    o.append(pair(salu('s_and_b32', sT0, sKs, 7, wrx=['scc']), salu('s_cmp_eq_u32', None, sT0, 0, wrx=['scc']),
                  salu('s_cselect_b32', sT0, sBig, 1024, rdx=['scc'])))
    o.append(salu('s_add_u32', sOo, sOo, sT0, wrx=['scc']))
    return o

def w_reads(c, ks):
    slot = ks % NS
    o = []
    for nu in range(7):
        for s_ in range(2):
            o.append(ds_readtr(c.WF(ks & 1, nu).sub(2 * s_, 2), c.vA, slot * WSLOT + s_ * 3584 + 32 * nu, tag=(f'W{slot}', ('W', ks))))
    return o

def step(c, ks, last=31):
    rm = c.rm
    mf = []
    for nu in range(7):
        for j in range(rm):
            mf.append(mfma(c.acc(j, nu), c.WF(ks & 1, nu), c.OF(ks % 4, j), c.acc(j, nu)))
    n = len(mf)
    fl = []
    ngrp = 7 + rm
    pre = []
    pre.append(wait_lg(*[c.WF(ks & 1, nu) for nu in range(7)]))
    if ks + 1 <= last:
        outstanding_after = sum(ngrp for k2 in (ks + 2,) if k2 <= last)
        w = F(wait_vm(outstanding_after), 0, 0, prio=9); fl.append(w)
        rs = w_reads(c, ks + 1)
        for m, x in enumerate(rs): fl.append(F(x, 0, min(n - 2, 2 + m), deps=[w], prio=5))
    if ks + 3 <= last:
        seq = group_issue(c, ks + 3)
        nd = sum(1 for x in seq if x.k in ('dma', 'vload'))
        prev = w; k = 0
        for x in seq:
            g = 2 + (k * (n - 5)) // nd
            if x.k in ('dma', 'vload'): f = F(x, g, min(n - 1, g + 2), deps=[prev], prio=4); k += 1
            elif ('m0', 0) in x.wr: f = F(x, max(0, g - 2), max(0, g - 1), deps=[prev], prio=6)
            else: f = F(x, max(0, g - 2), n - 1, deps=[prev], prio=3)
            fl.append(f); prev = f
    out, over = weave(mf, fl, pre=pre, name=f'k2step{ks}')
    return out

def epilogue2(c):
    rm = c.rm
    nq = rm * 7
    o = [nop(7), barrier()]
    va = c.tmp[0]; vl = c.tmp[1]
    o.append(valu('v_mbcnt_lo_u32_b32', vl, -1, 0))
    o.append(valu('v_mbcnt_hi_u32_b32', vl, -1, vl))
    o.append(valu('v_lshlrev_b32', va, 4, vl))
    o.append(salu('s_mul_i32', sT0, sW, 35840))
    o.append(valu('v_add_u32', c.tmp[2], sT0, va))
    for q in range(nq):
        j, nu = q // 7, q % 7
        o.append(I(f'ds_write_b128 {c.tmp[2]}, {c.acc(j, nu)} offset:{q*1024}', 'dsw', [c.tmp[2], c.acc(j, nu)], []))
    o += [wait_lg0(), barrier()]
    vi = c.tmp[3]; vg = c.tmp[4]; vy = c.tmp[5]
    o.append(valu('v_and_b32', vi, 15, vl)); o.append(valu('v_lshrrev_b32', vg, 4, vl))
    o.append(valu('v_mul_u32_u24', vi, 1792, vi)); o.append(valu('v_lshlrev_b32', vg, 3, vg))
    o.append(valu('v_add_u32', vy, vi, vg))
    per = (nq + 3) // 4
    o.append(salu('s_lshl_b32', sT0, sW, 10))
    o.append(valu('v_add_u32', va, sT0, va))
    bufs = [[V(16 + (u * 4 + p_) * 4, 4) for p_ in range(4)] for u in range(2)]
    vad = [V(48), V(49)]
    for n in range(per):
        u = n & 1
        lab = f'L_k2skip_{c.name}_{n}'
        guard = (4 * n + 3 >= nq)
        o.append(salu('s_add_u32', sT1, sW, 4 * n, wrx=['scc']))
        if guard:
            o.append(salu('s_cmp_ge_u32', None, sT1, nq, wrx=['scc']))
            o.append(raw(f's_cbranch_scc1 {lab}', 'branch'))
        for p_ in range(4):
            o.append(ds_read128(bufs[u][p_], va, n * 4096 + p_ * 35840 if n * 4096 + p_ * 35840 < 65536 else 0))
            if n * 4096 + p_ * 35840 >= 65536:
                o.pop()
                o.append(valu('v_add_u32', vad[0], p_ * 35840, va))
                o.append(ds_read128(bufs[u][p_], vad[0], n * 4096))
        o.append(salu('s_mul_i32', sT0, sT1, 37, ))
        o.append(salu('s_lshr_b32', sT0, sT0, 8, wrx=['scc']))
        o.append(salu('s_mul_i32', sKs, sT0, 7))
        o.append(salu('s_sub_u32', sKs, sT1, sKs, wrx=['scc']))
        o.append(salu('s_mul_i32', sT0, sT0, 16 * 1792))
        o.append(salu('s_lshl_b32', sKs, sKs, 5, wrx=['scc']))
        o.append(salu('s_add_u32', sT0, sT0, sKs, wrx=['scc']))
        o.append(wait_lg0())
        b0, b1, b2, b3 = bufs[u]
        for e in range(4): o.append(valu('v_add_f32', b0.sub(e), b0.sub(e), b1.sub(e)))
        for e in range(4): o.append(valu('v_add_f32', b2.sub(e), b2.sub(e), b3.sub(e)))
        for e in range(4): o.append(valu('v_add_f32', b0.sub(e), b0.sub(e), b2.sub(e)))
        o.append(valu('v_cvt_pk_bf16_f32', b1.sub(0), b0.sub(0), b0.sub(1)))
        o.append(valu('v_cvt_pk_bf16_f32', b1.sub(1), b0.sub(2), b0.sub(3)))
        o.append(I(f'buffer_store_dwordx2 {b1.sub(0, 2)}, {vy}, {sSRD_Y}, {sT0} offen', 'vstore', [b1.sub(0, 2), vy, sSRD_Y, sT0], []))
        if guard: o.append(label(lab))
    return o

def build_variant2(c):
    nm = c.name
    prog = []; trace = []
    def sec(name, ins, emit=True):
        set_keys(name, ins); trace.extend(ins)
        if emit: prog.extend(ins)
    pre = []
    for ks in range(3):
        for x in group_issue(c, ks):
            pre.append(x)
            if ('m0', 0) in x.wr: pre.append(nop(0))
    for j in range(c.rm):
        for nu in range(7):
            for e in range(4): pre.append(valu('v_accvgpr_write_b32', c.acc(j, nu).sub(e), 0))
    ngrp = 7 + c.rm
    pre.append(wait_vm(2 * ngrp))
    pre += w_reads(c, 0)
    pre.append(salu('s_mov_b32', sCnt, 7))
    sec('pre', pre)
    lab = f'L_k2_{nm}'
    for trip in range(7):
        body = [label(lab)]
        for u in range(4): body += step(c, 4 * trip + u)
        body += [salu('s_sub_u32', sCnt, sCnt, 1, wrx=['scc']), salu('s_cmp_lg_u32', None, sCnt, 0, wrx=['scc']),
                 raw(f's_cbranch_scc1 {lab}', 'branch')]
        sec('loop', body, emit=(trip == 0))
    tail = []
    for ks in range(28, 32): tail += step(c, ks)
    sec('tail', tail)
    sec('epi', epilogue2(c))
    prog.append(raw('s_endpgm', 'branch'))
    resolve_waits(trace)
    errs = check_trace(trace, nm)
    return prog, trace, errs

def k2_setup():
    o = []
    t = lambda s: o.append(s)
    t('s_cmp_ge_u32 s2, 256')
    t('s_cbranch_scc1 L_k2_end')
    t('s_load_dwordx2 s[40:41], s[0:1], 32')
    t('s_load_dwordx2 s[42:43], s[0:1], 72')
    t('s_load_dwordx2 s[44:45], s[0:1], 80')
    t('s_load_dwordx2 s[46:47], s[0:1], 96')
    t('v_lshrrev_b32 v100, 6, v0')
    t('v_and_b32 v101, 63, v0')
    t('v_readfirstlane_b32 s16, v100')
    t('s_and_b32 s50, s2, 7'); t('s_lshr_b32 s51, s2, 3')
    t('s_lshr_b32 s52, s50, 2')
    t('s_and_b32 s53, s50, 3'); t('s_lshl_b32 s53, s53, 1'); t('s_lshr_b32 s54, s51, 4'); t('s_add_u32 s53, s53, s54')
    t('s_lshr_b32 s54, s51, 2'); t('s_and_b32 s54, s54, 3')
    t('s_and_b32 s55, s51, 3')
    t('s_waitcnt lgkmcnt(0)')
    t('s_cmp_eq_u32 s52, 0'); t('s_cselect_b64 s[40:41], s[40:41], s[42:43]')
    t('s_lshl_b32 s56, s52, 3'); t('s_add_u32 s56, s56, s53'); t('s_lshl_b32 s56, s56, 4')
    t('s_lshl_b32 s57, s16, 2'); t('s_add_u32 s56, s56, s57'); t('s_mul_i32 s56, s56, 163840')
    t('s_mul_i32 s57, s54, 40960'); t('s_add_u32 s56, s56, s57')
    t('s_add_u32 s4, s46, s56'); t('s_addc_u32 s5, s47, 0')
    t(f's_mov_b32 s6, {4*163840}'); t('s_mov_b32 s7, 0x20000')
    t(f's_mul_i32 s56, s16, {1024*896}'); t('s_mul_i32 s57, s55, 224'); t('s_add_u32 s56, s56, s57')
    t('s_add_u32 s8, s40, s56'); t('s_addc_u32 s9, s41, 0')
    t('s_sub_u32 s8, s8, 3072'); t('s_subb_u32 s9, s9, 0')
    t(f's_mov_b32 s10, {1024*896 + 3072}'); t('s_mov_b32 s11, 0x20000')
    t(f's_mul_i32 s56, s53, {304*1792}'); t(f's_mul_i32 s57, s54, {80*1792}'); t('s_add_u32 s56, s56, s57')
    t('s_mul_i32 s57, s52, 896'); t('s_add_u32 s56, s56, s57'); t('s_mul_i32 s57, s55, 224'); t('s_add_u32 s56, s56, s57')
    t('s_add_u32 s12, s44, s56'); t('s_addc_u32 s13, s45, 0')
    t(f's_sub_u32 s14, {8*304*1792}, s56'); t('s_mov_b32 s15, 0x20000')
    t(f's_mul_i32 s17, s16, {NS*WSLOT}')
    t('s_mov_b32 s18, 0'); t('s_mov_b32 s19, 0'); t('s_mov_b32 s23, 0'); t(f's_mov_b32 s24, {163840 - 7*1024}')
    t('v_lshlrev_b32 v0, 4, v101')
    for j in range(1, 5): t(f'v_add_u32 v{j}, {j*8192}, v0')
    t('s_mov_b32 s56, 4682')
    for b in range(7):
        t(f'v_add_u32 v102, {64*b}, v101')
        t('v_mul_lo_u32 v103, v102, s56'); t('v_lshrrev_b32 v103, 16, v103')
        t('v_mul_u32_u24 v104, 14, v103'); t('v_sub_u32 v104, v102, v104')
        t('v_mul_u32_u24 v103, 896, v103'); t('v_lshlrev_b32 v104, 4, v104'); t('v_add_u32 v103, v103, v104')
        t(f'v_add_u32 v{5+b}, {3072 - 1024*(b&3)}, v103')
    t('v_lshrrev_b32 v102, 2, v101'); t('v_mul_u32_u24 v102, 224, v102')
    t('v_and_b32 v103, 3, v101'); t('v_lshlrev_b32 v103, 3, v103'); t('v_add_u32 v102, v102, v103')
    t('v_add_u32 v12, s17, v102')
    t('s_cmp_eq_u32 s54, 3')
    t('s_cbranch_scc1 L_k2var_m4')
    return o
```

```python
import sys
from core import *
import gen1, gen2
from gen1 import *

KN = 'concat_heads__mha_block_cached__mha_block_cached__near_ridge'

def k1_setup(c5):
    o = []
    t = lambda s: o.append(s)
    t('s_cmp_ge_u32 s2, 256')
    t('s_cbranch_scc1 L_k1_end')
    t('s_load_dwordx8 s[40:47], s[0:1], 0')
    t('s_load_dwordx8 s[48:55], s[0:1], 40')
    t('s_load_dwordx2 s[56:57], s[0:1], 96')
    t('v_lshrrev_b32 v100, 6, v0')
    t('v_and_b32 v101, 63, v0')
    t('v_readfirstlane_b32 s27, v100')
    t('s_and_b32 s82, s2, 7')
    t('s_lshr_b32 s72, s2, 3')
    t('s_lshr_b32 s73, s82, 2')
    t('s_and_b32 s74, s82, 3')
    t('s_lshl_b32 s74, s74, 1')
    t('s_lshr_b32 s75, s72, 4')
    t('s_add_u32 s74, s74, s75')
    t('s_and_b32 s75, s72, 15')
    t('s_lshl_b32 s76, s74, 4')
    t('s_add_u32 s76, s76, s75')
    t('s_lshl_b32 s77, s73, 7')
    t('s_add_u32 s77, s77, s76')
    t('s_waitcnt lgkmcnt(0)')
    t('s_cmp_eq_u32 s73, 0')
    t('s_cselect_b64 s[40:41], s[40:41], s[48:49]')
    t('s_cselect_b64 s[42:43], s[42:43], s[50:51]')
    t('s_cselect_b64 s[44:45], s[44:45], s[52:53]')
    t('s_cselect_b64 s[46:47], s[46:47], s[54:55]')
    t('s_lshl_b32 s78, s76, 19')
    t('s_add_u32 s36, s42, s78'); t('s_addc_u32 s37, s43, 0')
    t('s_sub_u32 s4, s36, 2688'); t('s_subb_u32 s5, s37, 0')
    t('s_mov_b32 s6, 19072'); t('s_mov_b32 s7, 0x20000')
    t('s_add_u32 s8, s44, s78'); t('s_addc_u32 s9, s45, 0')
    t('s_sub_u32 s8, s8, 2688'); t('s_subb_u32 s9, s9, 0')
    t('s_mov_b32 s10, 19072'); t('s_mov_b32 s11, 0x20000')
    t('s_mul_i32 s78, s74, 272384')
    t('s_add_u32 s12, s40, s78'); t('s_addc_u32 s13, s41, 0')
    t('s_mov_b32 s14, 272384'); t('s_mov_b32 s15, 0x20000')
    t('s_lshl_b32 s78, s75, 9')
    t('s_add_u32 s16, s46, s78'); t('s_addc_u32 s17, s47, 0')
    t('s_sub_u32 s16, s16, 2688'); t('s_subb_u32 s17, s17, 0')
    t('s_mov_b32 s18, 0x40000'); t('s_mov_b32 s19, 0x20000')
    t('s_mul_i32 s78, s77, 163840')
    t('s_add_u32 s20, s56, s78'); t('s_addc_u32 s21, s57, 0')
    t('s_mov_b32 s22, 163840'); t('s_mov_b32 s23, 0x20000')
    t('s_mov_b32 s24, 2688'); t('s_mov_b32 s25, 1792'); t('s_mov_b32 s26, 896')
    t('s_lshl_b32 s78, s27, 12')
    for reg, base in ((30, LDS_V[0]), (31, LDS_V[1])):
        t(f's_add_u32 s{reg}, s78, {base}')
    for reg, base in zip(sKr, LDS_K): t(f's_mov_b32 {reg}, {base}')
    for reg, base in zip(sWr, LDS_W): t(f's_mov_b32 {reg}, {base}')
    t('s_mul_i32 s79, s27, 10240')
    t(f's_add_u32 s64, s79, {LDS_X}')
    t(f's_add_u32 s80, s64, {XSLOT}')
    t('s_xor_b32 s70, s64, s80')
    t('s_mov_b32 s60, 0'); t('s_mov_b32 s68, 0')
    t(f's_mov_b32 s38, {THR}'); t(f's_mov_b32 s39, {CSCALE}')
    t('s_mov_b32 s34, 0')
    t('v_and_b32 v102, 15, v101')
    t('v_lshrrev_b32 v103, 4, v101')
    t('v_lshrrev_b32 v104, 3, v101')
    t('v_and_b32 v105, 7, v101')
    t('v_and_b32 v106, 6, v104')
    t('v_xor_b32 v105, v105, v106')
    t('v_lshlrev_b32 v105, 4, v105')
    t('v_lshlrev_b32 v7, 9, v104'); t('v_add_u32 v7, v7, v105'); t('v_add_u32 v7, s78, v7')
    t('s_mul_i32 s80, s27, 80')
    t('v_add_u32 v107, s80, v104'); t('v_mul_u32_u24 v107, 896, v107'); t('v_add_u32 v90, v107, v105')
    t('s_and_b32 s80, s27, 1'); t('s_lshl_b32 s80, s80, 4'); t('s_lshr_b32 s81, s27, 1'); t('s_lshl_b32 s81, s81, 2')
    t('s_add_u32 s80, s80, s81')
    t('v_lshrrev_b32 v107, 2, v104'); t('v_lshlrev_b32 v107, 3, v107'); t('v_and_b32 v108, 3, v104')
    t('v_add_u32 v107, v107, v108'); t('v_add_u32 v107, s80, v107'); t('v_lshlrev_b32 v107, 13, v107')
    t('v_add_u32 v91, v107, v105')
    t('v_lshrrev_b32 v107, 3, v102')
    t('v_and_b32 v108, 7, v102'); t('v_lshlrev_b32 v108, 7, v108')
    t('v_and_b32 v109, 6, v102')
    for tau in range(2):
        t(f'v_add_u32 v110, {4*tau}, v103'); t('v_xor_b32 v110, v110, v109'); t('v_lshlrev_b32 v110, 4, v110')
        t('v_add_u32 v110, v110, v108')
        t(f'v_lshlrev_b32 v111, 12, v107'); t(f'v_add_u32 v{tau}, v110, v111')
        t(f'v_lshlrev_b32 v111, 10, v107'); t(f'v_add_u32 v110, v110, v111')
        t(f'v_add_u32 v110, s79, v110'); t(f'v_add_u32 v{80+tau}, {LDS_X}, v110')
    t('v_lshrrev_b32 v107, 2, v101'); t('v_and_b32 v107, 3, v107')
    t('v_and_b32 v108, 1, v103'); t('v_lshlrev_b32 v108, 2, v108'); t('v_add_u32 v107, v107, v108')
    t('v_and_b32 v109, 6, v107')
    t('v_lshlrev_b32 v107, 7, v107')
    t('v_lshrrev_b32 v108, 1, v103'); t('v_lshlrev_b32 v108, 12, v108'); t('v_add_u32 v107, v107, v108')
    t('v_and_b32 v108, 3, v101')
    t('v_lshrrev_b32 v110, 1, v108')
    t('v_and_b32 v111, 1, v108'); t('v_lshlrev_b32 v111, 3, v111')
    for u in range(4):
        t(f'v_add_u32 v112, {2*u}, v110'); t('v_xor_b32 v112, v112, v109'); t('v_lshlrev_b32 v112, 4, v112')
        t('v_add_u32 v112, v112, v111'); t(f'v_add_u32 v{2+u}, v112, v107')
    for tau in range(2):
        t(f'v_add_u32 v112, {4*tau}, v108'); t('v_xor_b32 v112, v112, v109'); t('v_lshlrev_b32 v112, 4, v112')
        t(f'v_add_u32 v{84+tau}, v112, v107')
    t(f'v_add_u32 v0, {LDS_K[0]}, v0'); t(f'v_add_u32 v1, {LDS_K[0]}, v1')
    t('s_mov_b32 s71, s78')
    t('s_mul_i32 s80, s27, 25600'); t(f's_add_u32 s80, s80, {LDS_Q}')
    t('v_lshlrev_b32 v6, 4, v101'); t('v_add_u32 v6, s80, v6')
    t('s_cmp_eq_u32 s27, 3')
    t('s_cbranch_scc1 L_var_r4')
    return o

def emit_k1(nt=True):
    out = []
    c5, c4 = Cfg(5, nt), Cfg(4, nt)
    name = 'attn_kernel'
    out += ['.globl ' + name, '.p2align 8', f'.type {name},@function', name + ':']
    out += k1_setup(c5)
    allerr = []
    for c in (c5, c4):
        prog, trace, errs = build_variant(c)
        allerr += errs
        if c.r == 4: out.append('L_var_r4:')
        out += [x.text() for x in prog]
    out += ['L_k1_end:', 's_endpgm']
    for e in allerr[:20]: print('ERR', e, file=sys.stderr)
    assert not allerr
    return name, out

def emit_k2():
    name = 'proj_kernel'
    out = ['.globl ' + name, '.p2align 8', f'.type {name},@function', name + ':']
    out += gen2.k2_setup()
    allerr = []
    for rm in (5, 4):
        c = gen2.Cfg2(rm)
        prog, trace, errs = gen2.build_variant2(c)
        allerr += errs
        if rm == 4: out.append('L_k2var_m4:')
        out += [x.text() for x in prog]
    out += ['L_k2_end:', 's_endpgm']
    for e in allerr[:20]: print('ERR', e, file=sys.stderr)
    assert not allerr
    return name, out

def desc(name, vgpr, accum, sgpr=102):
    return ['.section .rodata,"a"', '.p2align 6', f'.amdhsa_kernel {name}',
            f'  .amdhsa_next_free_vgpr {vgpr}', f'  .amdhsa_next_free_sgpr {sgpr}', f'  .amdhsa_accum_offset {accum}',
            '  .amdhsa_group_segment_fixed_size 0', '  .amdhsa_kernarg_size 104', '  .amdhsa_user_sgpr_count 2',
            '  .amdhsa_user_sgpr_kernarg_segment_ptr 1', '  .amdhsa_system_sgpr_workgroup_id_x 1', '.end_amdhsa_kernel', '.text']

def header(launches):
    ref = open('cdna_kernels/' + KN + '.s.ref').read().split('\n')
    h = [l for l in ref if l.startswith(';') and 'offset ' in l or l.startswith('; Kernarg')]
    h += [f'; @launch kernel={n} grid=({g},1,1) block=({b},1,1) lds={lds}' for n, g, b, lds in launches]
    h += ['.amdgcn_target "amdgcn-amd-amdhsa--gfx950"', '.text']
    return h

if __name__ == '__main__':
    nt = '--no-nt' not in sys.argv
    gen1.STAMPS = '--stamps' in sys.argv
    for x in sys.argv:
        if x.startswith('--exp='): gen1.EXP.update(x[6:].split(','))
    name, k1 = emit_k1(nt)
    if '--k1only' in sys.argv:
        txt = header([(name, 256, 256, 163840)]) + k1 + desc(name, 512, 256)
    else:
        name2, k2 = emit_k2()
        txt = header([(name, 256, 256, 163840), (name2, 256, 256, 143360)]) + k1 + k2 + desc(name, 512, 256) + desc(name2, 320, 176)
    txt = [l for l in txt if l != '']
    open(sys.argv[1], 'w').write('\n'.join(txt) + '\n')
```

```python
class Reg:
    __slots__ = ('k', 'i', 'n')
    def __init__(s, k, i, n=1): s.k, s.i, s.n = k, i, n
    def __str__(s): return f'{s.k}{s.i}' if s.n == 1 else f'{s.k}[{s.i}:{s.i+s.n-1}]'
    def regs(s): return [(s.k, s.i + x) for x in range(s.n)]
    def sub(s, o, n=1): return Reg(s.k, s.i + o, n)
def V(i, n=1): return Reg('v', i, n)
def A(i, n=1): return Reg('a', i, n)
def S(i, n=1): return Reg('s', i, n)

def _regs(xs):
    out = []
    for x in xs:
        if isinstance(x, Reg): out += x.regs()
        elif isinstance(x, str) and x in ('vcc', 'm0', 'scc', 'exec'): out.append((x, 0))
    return out

class I:
    __slots__ = ('t', 'k', 'rd', 'wr', 'cost', 'meta', 'key')
    def __init__(s, t, k, rd=(), wr=(), cost=4, **meta):
        s.t, s.k, s.rd, s.wr, s.cost, s.meta, s.key = t, k, _regs(rd), _regs(wr), cost, meta, None
    def text(s):
        if s.k == 'wait':
            m = s.meta
            if m.get('drop'): return ''
            if m.get('raw'): return s.t
            parts = []
            if m.get('vm') is not None: parts.append(f"vmcnt({m['vm']})")
            if m.get('lg') is not None: parts.append(f"lgkmcnt({m['lg']})")
            return 's_waitcnt ' + ' '.join(parts)
        return s.t

def mfma(D, Aop, Bop, C):
    c = str(C)
    rd = [Aop, Bop] + ([C] if isinstance(C, Reg) else [])
    return I(f'v_mfma_f32_16x16x32_bf16 {D}, {Aop}, {Bop}, {c}', 'mfma', rd, [D], cost=8, passes=4,
             C=(C if isinstance(C, Reg) else None), D=D)
def mfma32(D, Aop, Bop, C):
    c = str(C)
    rd = [Aop, Bop] + ([C] if isinstance(C, Reg) else [])
    return I(f'v_mfma_f32_32x32x16_bf16 {D}, {Aop}, {Bop}, {c}', 'mfma', rd, [D], cost=8, passes=8,
             C=(C if isinstance(C, Reg) else None), D=D)
def valu(op, dst, *src, extra='', rdx=(), wrx=()):
    t = f'{op} {dst}, ' + ', '.join(str(x) for x in src) + extra
    k = 'trans' if op in ('v_exp_f32', 'v_rcp_f32', 'v_log_f32', 'v_rsq_f32', 'v_sqrt_f32') else 'valu'
    wr = [dst] if isinstance(dst, Reg) or dst in ('vcc',) else []
    rmw = [dst] if op in ('v_fmac_f32',) else []
    return I(t, k, list(src) + rmw + list(rdx), wr + list(wrx), cost=8 if k == 'trans' else 4)
def salu(op, dst, *src, rdx=(), wrx=()):
    ops = [str(dst)] + [str(x) for x in src] if dst is not None else [str(x) for x in src]
    t = f'{op} ' + ', '.join(ops)
    return I(t, 'salu', list(src) + list(rdx), ([dst] if dst is not None else []) + list(wrx))
def ds_read128(dst, addr, off, tag=None):
    return I(f'ds_read_b128 {dst}, {addr} offset:{off}', 'dsr', [addr], [dst], tag=tag)
def ds_readtr(dst, addr, off, tag=None):
    return I(f'ds_read_b64_tr_b16 {dst}, {addr} offset:{off}', 'dsr', [addr], [dst], tag=tag)
def ds_write128(addr, src, off, tag=None):
    return I(f'ds_write_b128 {addr}, {src} offset:{off}', 'dsw', [addr, src], [], tag=tag)
def ds_bperm(dst, addr, src):
    return I(f'ds_bpermute_b32 {dst}, {addr}, {src}', 'dsr', [addr, src], [dst])
def dma(voff, srd, soff, off, nt=False, tag=None, slot=None):
    f = ' nt' if nt else ''
    return I(f'buffer_load_dwordx4 {voff}, {srd}, {soff} offen offset:{off}{f} lds', 'dma',
             [voff, srd, 'm0'] + ([soff] if isinstance(soff, Reg) else []), [], tag=tag, slot=slot)
def wait_lg(*regs):
    return I('', 'wait', lg=None, vm=None, need=_regs(regs), auto=True)
def wait_lg0():
    return I('', 'wait', lg=0, vm=None)
def wait_vm(n):
    return I('', 'wait', lg=None, vm=n)
def wait_vmt(*tags, regs=()):
    return I('', 'wait', lg=None, vm=None, vtags=list(tags), vregs=_regs(regs), autovm=True)
def barrier():
    return I('s_barrier', 'barrier')
def raw(t, k='salu', rd=(), wr=(), cost=4, **meta):
    return I(t, k, rd, wr, cost, **meta)
def pair(*ins):
    x = I('\n'.join(i.t for i in ins), 'salu', cost=sum(i.cost for i in ins))
    for i in ins: x.rd += i.rd; x.wr += i.wr
    return x
def label(name):
    return I(name + ':', 'label', cost=0)
def nop(n):
    return I(f's_nop {n}', 'nop', cost=4 * (n + 1), n=n)

class F:
    __slots__ = ('ins', 'lo', 'hi', 'deps', 'placed', 'prio')
    def __init__(s, ins, lo, hi, deps=(), prio=0):
        s.ins, s.lo, s.hi, s.deps, s.placed, s.prio = ins, lo, hi, list(deps), None, prio

def weave(mfmas, fillers, pre=(), budget=8, name=''):
    n = len(mfmas)
    out = list(pre)
    todo = list(fillers)
    over = 0
    changed = True
    while changed:
        changed = False
        for f in todo:
            for d in f.deps:
                if d.hi > f.hi: d.hi = f.hi; changed = True
    for f in todo:
        if f.lo > f.hi: f.lo = f.hi
    for g in range(-1, n):
        if g >= 0: out.append(mfmas[g])
        used = 0
        while True:
            cand = [f for f in todo if f.lo <= g and all(d.placed is not None for d in f.deps)]
            if not cand: break
            cand.sort(key=lambda f: (f.hi, -f.prio))
            pick = None
            for f in cand:
                forced = f.hi <= g
                lim = budget if g >= 0 else 10 ** 6
                if g == -1 and not forced: continue
                ok_trans = not (f.ins.k != 'trans' and any(d.ins.k == 'trans' and d.placed == g and out[-1] is d.ins for d in f.deps))
                if not ok_trans and not forced: continue
                if forced or used + f.ins.cost <= lim:
                    pick = f; break
            if pick is None: break
            if any(d.ins.k == 'trans' and out[-1] is d.ins for d in pick.deps) and pick.ins.k != 'trans':
                out.append(nop(0)); used += 4
            if pick.ins.k == 'dma' and ('m0', 0) in out[-1].wr:
                out.append(nop(0)); used += 4
            out.append(pick.ins); pick.placed = g; used += pick.ins.cost
            todo.remove(pick)
        if g >= 0 and used > budget: over += used - budget
        late = [f for f in todo if f.hi <= g]
        assert not late, (name, g, [(f.ins.text(), f.lo, f.hi) for f in late])
    assert not todo, (name, [(f.ins.text(), f.lo, f.hi) for f in todo])
    return out, over

def set_keys(sec, lst):
    for i, x in enumerate(lst): x.key = (sec, i)
    return lst

def resolve_waits(trace):
    best = {}
    needed = set()
    q = []
    vq = []; vbest = {}
    for x in trace:
        if x.k in ('dma', 'vload', 'vstore'): vq.append(x)
        if x.k == 'wait':
            m = x.meta
            if m.get('autovm'):
                tags = set(m['vtags']); rg = set(m['vregs'])
                pos = -1
                for i, d in enumerate(vq):
                    if d.meta.get('tag') in tags or (d.k == 'vload' and rg & set(d.wr)): pos = i
                nn = min(63, len(vq) - 1 - pos) if pos >= 0 else 63
                vbest[x.key] = min(vbest.get(x.key, 63), nn)
                if pos >= 0: vq = vq[pos + 1:]
            else:
                vm = m.get('vm')
                if m.get('raw'):
                    import re
                    a_ = re.search(r'vmcnt\((\d+)\)', x.t); vm = int(a_.group(1)) if a_ else None
                if vm is not None and len(vq) > vm: vq = vq[len(vq) - vm:] if vm > 0 else []
    for x in trace:
        if x.k == 'wait' and x.meta.get('autovm'): x.meta['vm'] = vbest[x.key]
    for x in trace:
        if x.k in ('dsr', 'dsw'):
            q.append(x)
        elif x.k == 'wait':
            m = x.meta
            if m.get('auto'):
                need = set(m['need'])
                pos = -1
                for i, d in enumerate(q):
                    if need & set(d.wr): pos = i
                nn = min(15, len(q) - 1 - pos) if pos >= 0 else 15
                best[x.key] = min(best.get(x.key, 15), nn)
                if pos >= 0:
                    q = q[pos + 1:]; needed.add(x.key)
            elif m.get('lg') is not None:
                nn = m['lg']; q = q[len(q) - nn:] if nn < len(q) and nn > 0 else ([] if nn == 0 else q)
            elif m.get('raw') and 'lgkmcnt(0)' in x.t:
                q = []
    for x in trace:
        if x.k == 'wait' and x.meta.get('auto'):
            x.meta['lg'] = best[x.key]
            x.meta['drop'] = x.key not in needed
    return best

class Violation(Exception): pass

def check_trace(trace, name=''):
    q = []
    vq = []
    landed = set()
    published = set()
    slot_reads_open = {}
    slot_tile = {}
    errs = []
    hist = []
    def err(i, msg): errs.append(f'{name}[{i}] {trace[i].text()} :: {msg}')
    reads_since_barrier = {}
    pend_slot = {}
    issued = {}
    for i, x in enumerate(trace):
        rd, wr = set(x.rd), set(x.wr)
        if x.k not in ('wait', 'label'):
            for d in q:
                if d.k == 'dsr' and (set(d.wr) & (rd | wr)):
                    err(i, f'touches {set(d.wr) & (rd | wr)} of outstanding {d.text()}')
            for d in vq:
                if d.k == 'vload' and (set(d.wr) & (rd | wr)):
                    err(i, f'touches outstanding vmem load {d.text()}')
        states = 0
        for y in reversed(hist):
            need = 0
            yw, yr = set(y.wr), set(y.rd)
            if x.k == 'mfma':
                if y.k in ('valu', 'trans') and (yw & rd): need = 2
                if y.k == 'mfma':
                    p = y.meta['passes']
                    C = x.meta['C']; Cset = set(C.regs()) if C is not None else set()
                    ab = rd - Cset if C is not None else rd
                    ab = set(x.rd[:8])
                    if yw & ab: need = max(need, {4: 8, 8: 12}[p])
                    if yw & Cset:
                        same = (C.k, C.i, C.n) == (y.meta['D'].k, y.meta['D'].i, y.meta['D'].n) and p == x.meta['passes']
                        if not same: need = max(need, {4: 6, 8: 10}[p])
                    elif (yw & wr) and not (yw & Cset):
                        need = max(need, {4: 6, 8: 10}[p])
            if x.k in ('valu', 'trans', 'dsr', 'dsw', 'dma', 'vload', 'vstore'):
                if y.k == 'mfma':
                    p = y.meta['passes']
                    if yw & (rd | wr): need = max(need, {4: 8, 8: 12}[p])
                    if x.k in ('valu', 'trans') and y.meta['C'] is not None and (set(y.meta['C'].regs()) & wr):
                        need = max(need, {4: 3, 8: 7}[p])
            if x.k == 'valu' and y.k == 'trans' and (yw & rd): need = max(need, 1)
            if x.k in ('valu', 'trans') and y.k in ('valu', 'trans'):
                sg = {r for r in yw if r[0] in ('s', 'vcc')}
                if sg & rd: need = max(need, 2)
                if x.t.startswith('v_readfirstlane') or x.t.startswith('v_readlane'):
                    if yw & rd: need = max(need, 1)
                if x.t.startswith('v_permlane') or 'dpp' in x.t or 'row_' in x.t:
                    if yw & rd: need = max(need, 2)
            if x.k in ('dma', 'vload', 'vstore') and y.k in ('valu', 'trans'):
                if {r for r in yw if r[0] == 's'} & rd: need = max(need, 5)
            if x.k == 'dma' and y.k == 'salu' and ('m0', 0) in yw: need = max(need, 1)
            if x.k in ('valu', 'trans') and y.k == 'vstore' and y.meta.get('wide') and (set(y.meta['data']) & wr): need = max(need, 2)
            if x.k in ('dsr', 'vload', 'mfma') and y.k == 'vstore' and y.meta.get('wide') and (set(y.meta['data']) & wr): need = max(need, 1)
            if need > states: err(i, f'hazard: needs {need} states after {y.text()}, has {states}')
            states += (y.meta['n'] + 1) if y.k == 'nop' else 1
            if states >= 20: break
        if x.k != 'label': hist.append(x)
        if len(hist) > 40: hist = hist[-30:]
        if x.k in ('dsr', 'dsw'):
            q.append(x)
            if len(q) > 15 and x.k == 'dsr': err(i, 'more than 15 DS ops outstanding')
            tag = x.meta.get('tag')
            if tag is not None:
                slot, tile = tag
                if x.k == 'dsr':
                    if tile not in published: err(i, f'reads unpublished tile {tile}')
                    if slot_tile.get(slot) != tile: err(i, f'slot {slot} holds {slot_tile.get(slot)}, expected {tile}')
                    pend_slot[id(x)] = slot
                    reads_since_barrier[slot] = True
        elif x.k in ('dma', 'vload', 'vstore'):
            vq.append(x)
            if len(vq) > 63: err(i, 'more than 63 VMEM ops outstanding')
            if x.k == 'dma' and x.meta.get('tag') is not None:
                tile, slot = x.meta['tag'], x.meta['slot']
                private = x.meta.get('private', False)
                if slot_tile.get(slot) != tile:
                    for d in q:
                        if pend_slot.get(id(d)) == slot: err(i, f'DMA into slot {slot} with a read outstanding')
                    if reads_since_barrier.get(slot) and not private: err(i, f'DMA into slot {slot} without a barrier after its reads')
                    slot_tile[slot] = tile
                issued[tile] = issued.get(tile, 0) + 1
        elif x.k == 'wait':
            m = x.meta
            lg, vm = m.get('lg'), m.get('vm')
            if m.get('raw'):
                import re
                a_ = re.search(r'lgkmcnt\((\d+)\)', x.t); lg = int(a_.group(1)) if a_ else None
                a_ = re.search(r'vmcnt\((\d+)\)', x.t); vm = int(a_.group(1)) if a_ else None
            if lg is not None and len(q) > lg: q = q[len(q) - lg:] if lg > 0 else []
            if vm is not None and len(vq) > vm:
                done = vq[:len(vq) - vm]; vq = vq[len(vq) - vm:] if vm > 0 else []
                for d in done:
                    if d.k == 'dma' and d.meta.get('tag') is not None:
                        landed.add(d.meta['tag'])
                        if d.meta.get('private') and not any(e.meta.get('tag') == d.meta['tag'] for e in vq if e.k == 'dma'):
                            published.add(d.meta['tag'])
        elif x.k == 'barrier':
            for tile in landed:
                if not any(e.k == 'dma' and e.meta.get('tag') == tile for e in vq): published.add(tile)
            open_slots = {pend_slot[id(d)] for d in q if id(d) in pend_slot}
            for s_ in list(reads_since_barrier):
                if s_ not in open_slots: reads_since_barrier[s_] = False
    return errs

def est_cycles(lst):
    tot = 0; cur = None
    for x in lst:
        if x.k == 'label': continue
        if x.k == 'mfma':
            if cur is not None: tot += max(cur[0], cur[1])
            cur = [16 if x.meta['passes'] == 4 else 32, 8]
        else:
            if cur is None: tot += x.cost
            else: cur[1] += x.cost
    if cur is not None: tot += max(cur[0], cur[1])
    return tot
```

```python
from core import *

LDS_V = [0, 16384]
LDS_K = [32768, 49152, 65536]
LDS_Q = 81920
LDS_W = [16384, 49152, 65536]
LDS_X = 81920
XSLOT = 38912
THR = 0x4e800000
CSCALE = 0x3db8aa3b

sWG = S(2)
sSRD_K, sSRD_V, sSRD_X, sSRD_W, sSRD_O = S(4, 4), S(8, 4), S(12, 4), S(16, 4), S(20, 4)
sC = [S(24), S(25), S(26), 0]
sW = S(27)
sMV = [S(30), S(31)]
sKr = [S(28), S(29), S(35)]
sW4 = S(71)
sCnt = S(32); sInc = S(33); sKoff = S(34)
sKB = S(36, 2)
sThr = S(38); sCs = S(39)
sXoff = S(60); sWr = [S(61), S(62), S(67)]; sXso = S(63); sMX = S(64); sT0 = S(65); sT1 = S(66); sXs = S(68); sXtog = S(70); sT2 = S(69); sWoL = S(72); sC4096 = S(73)

class Cfg:
    def __init__(s, r, nt=True):
        s.r = r; s.nt = nt; s.ntw = False
        s.vKA = [V(0), V(1)]; s.vVA = [V(2), V(3), V(4), V(5)]; s.vQA = V(6); s.vD = V(7)
        s.Fq = [V(8 + 4 * i, 4) for i in range(8)]
        s.S = lambda a, j: V(40 + (j * 2 + a) * 4, 4)
        s.P = lambda j: V(80 + 4 * j, 4)
        s.NM = lambda j: V(100 + 4 * j, 4)
        s.L = lambda par, j: V(120 + par * r + j)
        if r == 5:
            s.Rsteps = [0, 1, 7]
            s.Qr = lambda t, j: V(130 + (s.Rsteps.index(t) * 5 + j) * 4, 4)
        else:
            s.Rsteps = list(range(8))
            s.Qr = lambda t, j: V(128 + (t * 4 + j) * 4, 4)
        s.Lsteps = [t for t in range(8) if t not in s.Rsteps]
        s.O = lambda T, j: A((T * 4 + j) * 4, 4) if j < 4 else V(192 + 4 * T, 4)
        s.tmp = [V(190), V(191)] if r == 5 else [V(116), V(117)]
        s.XF = lambda par, j: V(40 + (par * 5 + j) * 4, 4)
        s.vXA = [V(80), V(81)]; s.vXc = [V(82), V(83)]
        s.vWA = [V(84), V(85)]; s.vWc = [[V(86), V(87)], [V(88), V(89)]]
        s.vXD = V(90); s.vWD = V(91)
        s.name = f'r{r}'

EXP = set()
def dma_tile(c, srd, m0src, tile, slot, voff, nt, advance):
    if isinstance(m0src, tuple): o = [salu('s_add_u32', 'm0', m0src[0], m0src[1])]; o[0].wr = [('m0', 0), ('scc', 0)]
    else: o = [salu('s_mov_b32', 'm0', m0src)]; o[0].wr = [('m0', 0)]
    seq = []
    for tp in range(4):
        seq.append(dma(voff, srd, sC[tp], tp * 1024, nt=nt, tag=tile, slot=slot))
    if 'nodma' in EXP and tile[1] >= 2: seq = [nop(0) for _ in seq]
    adv = []
    if advance is not None:
        adv = [pair(salu('s_add_u32', srd.sub(0), srd.sub(0), advance, wrx=['scc']),
                    salu('s_addc_u32', srd.sub(1), srd.sub(1), 0, rdx=['scc'], wrx=['scc']))]
    return o, seq, adv

def chain(instrs, lo, hi, first_dep=None):
    fs = []
    for x in instrs:
        fs.append(F(x, lo, hi, deps=([fs[-1]] if fs else ([first_dep] if first_dep else []))))
    return fs

def m0_then(o, seq, adv, lo, hi, dep=None):
    ins = o + [nop_free()] + seq + adv
    return chain(ins, lo, hi, dep)

def spread(o, seq, adv, gaps, dep=None, slack=2):
    fs = [F(o[0], gaps[0] - 2, gaps[0] - 1, deps=[dep] if dep else [], prio=4)]
    for x, g in zip(seq, gaps):
        fs.append(F(x, g, g + slack, deps=[fs[-1]], prio=4))
    for x in adv: fs.append(F(x, gaps[-1], gaps[-1] + slack + 2, deps=[fs[-1]]))
    return fs

def rotate3(regs, tmp):
    return [salu('s_mov_b32', tmp, regs[0]), salu('s_mov_b32', regs[0], regs[1]),
            salu('s_mov_b32', regs[1], regs[2]), salu('s_mov_b32', regs[2], tmp)]

def nop_free():
    return nop(0)

def k_reads(c, p, step):
    out = []
    for a in range(2):
        buf = c.Fq[2 * (step & 1) + a]
        out.append(ds_read128(buf, c.vKA[step & 1], a * 8192 + (step >> 1) * 1024, tag=(f'K{p%3}', ('K', p))))
    return out

def v_reads(c, pv, k, groups):
    slot = LDS_V[pv & 1]
    out = []
    for x in range(2):
        T = 2 * k + x
        buf = c.Fq[groups[k % 3][x]]
        for s_ in range(2):
            out.append(ds_readtr(buf.sub(2 * s_, 2), c.vVA[T & 3], slot + s_ * 8192 + (T >> 2) * 1024, tag=(f'V{pv&1}', ('V', pv))))
    return out

GV = [(4, 5), (6, 7), (2, 3)]
GV_FINAL = [(0, 1), (2, 3), (4, 5)]

def cvts(c, j):
    P = c.P(j)
    return [valu('v_cvt_pk_bf16_f32', P.sub(0), c.S(0, j).sub(0), c.S(0, j).sub(1)),
            valu('v_cvt_pk_bf16_f32', P.sub(1), c.S(0, j).sub(2), c.S(0, j).sub(3)),
            valu('v_cvt_pk_bf16_f32', P.sub(2), c.S(1, j).sub(0), c.S(1, j).sub(1)),
            valu('v_cvt_pk_bf16_f32', P.sub(3), c.S(1, j).sub(2), c.S(1, j).sub(3))]

def qk_phase(c, p, first=False, issue_v=True, issue_k=True, kadv=None, vm_a=12, pre_v=True):
    r = c.r
    n1 = 2 * r
    mf = []
    qbuf = {}
    nL = 0
    for t in range(8):
        for j in range(r):
            if t in c.Rsteps: B = c.Qr(t, j)
            else:
                B = c.Fq[4 + nL % 4]; qbuf[(t, j)] = (nL, B); nL += 1
            for a in range(2):
                C = c.NM(j) if t == 0 else c.S(a, j)
                mf.append(mfma(c.S(a, j), c.Fq[2 * (t & 1) + a], B, C))
    idx = lambda t, j, a: t * n1 + 2 * j + a
    fl = []
    if not first:
        for j in range(1, r):
            cv = cvts(c, j)
            for x in cv: fl.append(F(x, max(0, idx(0, j, 0) - 3), idx(0, j, 0) - 1, prio=5))
    fl.append(F(wait_lg(c.Fq[0], c.Fq[1]), -1, -1, prio=9))
    kw = {}
    for t in range(1, 8):
        kw[t] = F(wait_lg(c.Fq[2 * (t & 1)], c.Fq[2 * (t & 1) + 1]), idx(t, 0, 0) - 1, idx(t, 0, 0) - 1, prio=9)
    kr = {}
    for t in range(2, 8):
        lo = idx(t - 1, 0, 0) - 1 if t > 2 else idx(1, 0, 0) - 1
        lo = idx(t - 2, r - 1, 1)
        rs = k_reads(c, p, t)
        kr[t] = [F(rs[0], lo, lo + 2, prio=4), F(rs[1], lo, lo + 3, prio=4)]
        fl += kr[t]
        kw[t].deps += kr[t]
    qr = {}
    lst = sorted(qbuf.items(), key=lambda kv: kv[1][0])
    for (t, j), (n, B) in lst:
        ins = ds_read128(B, c.vQA, n * 1024)
        if n < 4: lo, hi = idx(1, 0, 0), idx(1, 0, 0) + 2 + n
        else:
            (t0, j0) = lst[n - 4][0]
            lo = idx(t0, j0, 1); hi = lo + 1
        qr[n] = F(ins, lo, hi, prio=6)
        fl.append(qr[n])
        w = F(wait_lg(B), idx(t, j, 0) - 1, idx(t, j, 0) - 1, deps=[qr[n]], prio=8)
        if j == 0:
            kw[t].ins.meta['need'] += B.regs(); kw[t].deps.append(qr[n])
        else: fl.append(w)
    for t in range(1, 8): fl.append(kw[t])
    g_lo, g_hi = idx(1, 0, 0) + 2, idx(7, 0, 0) - 4
    ng = (4 if issue_v else 0) + (4 if issue_k else 0)
    gaps = [g_lo + (k * (g_hi - g_lo)) // max(1, ng - 1) for k in range(ng)]
    lastf = None
    fl.append(F(salu('s_add_u32', sKoff, sKoff, 16384, wrx=['scc']), idx(1, 0, 0), idx(1, 0, 0) + 6) if issue_v else F(nop(0), 0, idx(1,0,0)+6))
    if issue_v:
        o, seq, adv = dma_tile(c, sSRD_V, sMV[p & 1], ('V', p), f'V{p&1}', c.vD, c.nt, 16384)
        fs = spread(o, seq, adv, gaps[:4]); fl += fs; lastf = fs[4]; gaps = gaps[4:]
    if issue_k:
        tile = ('K', p + 2) if p + 2 <= 31 else ('Kdummy', p)
        o, seq, adv = dma_tile(c, sSRD_K, (sKr[2], sW4), tile, f'K{(p+2)%3}', c.vD, c.nt, kadv)
        fs = spread(o, seq, adv, gaps, lastf); fl += fs; lastk = fs[0]
    rot = [salu('s_sub_u32', sT2, sKr[1], sKr[0], wrx=['scc']),
           valu('v_add_u32', c.vKA[0], sT2, c.vKA[0]), valu('v_add_u32', c.vKA[1], sT2, c.vKA[1])] + rotate3(sKr, sT0)
    fl += chain(rot, idx(6, 0, 0), idx(7, 0, 0) + 2, None)
    fl[-len(rot)].deps += kr[7] + kr[6] + ([lastk] if issue_k else [])
    g7 = idx(7, 0, 0) - 1
    fa = F(wait_vm(vm_a), g7, g7, deps=[kw[7]], prio=7)
    fb = F(barrier(), g7, g7, deps=[fa], prio=7)
    fl += [fa, fb]
    last = idx(7, r - 1, 1)
    if pre_v:
        for k in range(2):
            for n, x in enumerate(v_reads(c, p - 1, k, GV)):
                fl.append(F(x, g7, min(last, g7 + 2 + 2 * k + n // 2), deps=[fb], prio=6 - k))
    out, over = weave(mf, fl, name=f'qk{p}')
    return out

def sm_fillers(c, p, n_gaps):
    r = c.r
    fl = []; exps = []; adds = []
    Ln, Lo = (lambda j: c.L(p & 1, j)), (lambda j: c.L((p - 1) & 1, j))
    order = [(j, a, e) for j in range(r) for a in range(2) for e in range(4)]
    ne = len(order)
    span = n_gaps - 8
    prev = {}
    for n, (j, a, e) in enumerate(order):
        x = c.S(a, j).sub(e)
        lo = (n * span) // ne
        fe = F(valu('v_exp_f32', x, x), max(0, lo), lo + 3, prio=3)
        first = (a == 0 and e == 0)
        fa = F(valu('v_add_f32', Ln(j), Lo(j) if first else Ln(j), x), lo, lo + 6,
               deps=[fe] + ([prev[j]] if j in prev else []), prio=2)
        prev[j] = fa
        exps.append(fe); adds.append(fa)
    return exps, adds, [prev[j] for j in range(r)]

def pv_phase(c, pv, sm=None, groups=GV, bar_b=None, k_next=None, sp_label=None, final=False, v_next=None, pre_bar=(), wpre=None):
    r = c.r
    mf = []
    for T in range(16):
        buf = c.Fq[groups[(T >> 1) % 3][T & 1]]
        for j in range(r):
            mf.append(mfma(c.O(T, j), buf, c.P(j), c.O(T, j)))
    n = len(mf)
    pstart = lambda k: 2 * k * r
    fl = []
    waits = {}
    for k in range(8):
        g = pstart(k) - 1
        bufs = [c.Fq[x] for x in groups[k % 3]]
        waits[k] = F(wait_lg(*bufs), g, g, prio=9)
    for k in range(2, 8):
        lo = pstart(k - 2)
        for m, x in enumerate(v_reads(c, pv, k, groups)):
            f = F(x, lo, lo + 2 + (m * (2 * r - 6)) // 4 + (1 if r == 4 else 0), prio=5)
            fl.append(f); waits[k].deps.append(f)
    fl += list(waits.values())
    if final:
        for j in range(1, r):
            for x in cvts(c, j): fl.append(F(x, -1, max(-1, j - 2), prio=8))
    g7 = pstart(7) - 1
    dep = waits[7]
    if bar_b is not None:
        fa = F(wait_vm(bar_b), g7, g7, deps=[waits[7]], prio=7)
        fl.append(fa)
        for x in pre_bar:
            fa = F(x, g7, g7, deps=[fa], prio=7); fl.append(fa)
        fb = F(barrier(), g7, g7, deps=[fa], prio=7)
        fl.append(fb); dep = fb
    if wpre is not None: fl += wpre(c, n, None)
    if k_next is not None:
        for st in range(2):
            for m, x in enumerate(k_reads(c, k_next, st)):
                fl.append(F(x, g7, g7 + 1 + 2 * st + m, deps=[dep], prio=6))
    if v_next is not None:
        for k in range(2):
            for m, x in enumerate(v_reads(c, v_next, k, GV_FINAL)):
                fl.append(F(x, g7, g7 + 1 + 2 * k + m // 2, deps=[dep], prio=6))
    if sm is not None:
        exps, adds, lastadd = sm_fillers(c, sm, n)
        fl += exps + adds
        Ln = lambda j: c.L(sm & 1, j)
        t0 = c.tmp[0]
        m1 = F(valu('v_max3_f32', t0, Ln(0), Ln(1), Ln(2)), n - 6, n - 2, deps=lastadd[:3], prio=1)
        if r == 5: m2 = F(valu('v_max3_f32', t0, t0, Ln(3), Ln(4)), n - 6, n - 1, deps=[m1] + lastadd, prio=1)
        else: m2 = F(valu('v_max_f32', t0, t0, Ln(3)), n - 6, n - 1, deps=[m1] + lastadd, prio=1)
        cmp_ = F(valu('v_cmp_nle_f32', 'vcc', t0, sThr, extra=''), n - 5, n - 1, deps=[m2], prio=1)
        cmp_.ins.t = f'v_cmp_nge_f32 vcc, {sThr}, {t0}'
        cv = [F(x, n - r, n - 1, deps=[f for f in exps[:8]] + adds[:8], prio=1) for x in cvts(c, 0)]
        br = F(raw(f's_cbranch_vccnz {sp_label}', 'branch', rd=['vcc']), n - 1, n - 1, deps=[cmp_] + cv + lastadd, prio=0)
        fl += [m1, m2, cmp_] + cv + [br]
    out, over = weave(mf, fl, name=f'pv{pv}')
    if sm is not None:
        out.append(label(sp_label + '_ret'))
    return out

def xlane(c, regs, tmps, op):
    o = []
    a16, a32 = c.tmp
    o.append(valu('v_mbcnt_lo_u32_b32', a16, -1, 0))
    o.append(valu('v_mbcnt_hi_u32_b32', a16, -1, a16))
    o.append(valu('v_xor_b32', a32, 32, a16))
    o.append(valu('v_xor_b32', a16, 16, a16))
    o.append(valu('v_lshlrev_b32', a32, 2, a32))
    o.append(valu('v_lshlrev_b32', a16, 2, a16))
    for ad in (a16, a32):
        for x, t in zip(regs, tmps): o.append(ds_bperm(t, ad, x))
        o.append(wait_lg0())
        for x, t in zip(regs, tmps): o.append(valu(op, x, x, t))
    return o

def rowmax(c, mx):
    o = []
    for j in range(c.r):
        s0, s1 = c.S(0, j), c.S(1, j)
        o.append(valu('v_max3_f32', mx[j], s0.sub(0), s0.sub(1), s0.sub(2)))
        o.append(valu('v_max3_f32', mx[j], mx[j], s0.sub(3), s1.sub(0)))
        o.append(valu('v_max3_f32', mx[j], mx[j], s1.sub(1), s1.sub(2)))
        o.append(valu('v_max_f32', mx[j], mx[j], s1.sub(3)))
    return o

def exp_block(c, p, mx, have_old):
    o = []
    for j in range(c.r):
        for a in range(2):
            for e in range(4):
                x = c.S(a, j).sub(e); o.append(valu('v_sub_f32', x, x, mx[j]))
    for j in range(c.r):
        for a in range(2):
            for e in range(4):
                x = c.S(a, j).sub(e); o.append(valu('v_exp_f32', x, x))
    o.append(nop(0))
    for j in range(c.r):
        Ln = c.L(p & 1, j)
        n = 0
        for a in range(2):
            for e in range(4):
                x = c.S(a, j).sub(e)
                if n == 0:
                    if have_old: o.append(valu('v_add_f32', Ln, c.L((p - 1) & 1, j), x))
                    else: o.append(valu('v_mov_b32', Ln, x))
                else: o.append(valu('v_add_f32', Ln, Ln, x))
                n += 1
    o += cvts(c, 0)
    return o

def init_softmax(c):
    r = c.r
    mx = [V(84 + j) for j in range(r)]; tm = [V(90 + j) for j in range(r)]
    o = [nop(7)]
    o += rowmax(c, mx)
    o += xlane(c, mx, tm, 'v_max_f32')
    for j in range(r):
        for e in range(4): o.append(valu('v_sub_f32', c.NM(j).sub(e), 0, mx[j]))
    o += exp_block(c, 0, mx, False)
    return o

def slow_path(c, p, name):
    r = c.r
    o = [label(name), wait_lg0(), nop(7), nop(7)]
    vo = c.tmp[0]; vl = c.tmp[1]
    o.append(valu('v_mbcnt_lo_u32_b32', vl, -1, 0))
    o.append(valu('v_mbcnt_hi_u32_b32', vl, -1, vl))
    o.append(valu('v_and_b32', vo, 15, vl))
    o.append(valu('v_lshlrev_b32', vo, 9, vo))
    o.append(valu('v_lshrrev_b32', vl, 4, vl))
    o.append(valu('v_lshlrev_b32', vl, 4, vl))
    o.append(valu('v_add_u32', vo, vo, vl))
    o.append(valu('v_add_u32', vo, sKoff, vo))
    for t in range(8):
        for a in range(2):
            if a == 1: o.append(valu('v_add_u32', vl, 8192, vo))
            ad = vo if a == 0 else vl
            o.append(I(f'global_load_dwordx4 {c.Fq[4+a]}, {ad}, {sKB} offset:{64*t}', 'vload', [ad, sKB], [c.Fq[4 + a]]))
        if t in c.Lsteps:
            nb = c.Lsteps.index(t) * r
        o.append(wait_vm(0))
        for j in range(r):
            if t in c.Rsteps: B = c.Qr(t, j)
            else:
                B = c.Fq[6]
                o.append(ds_read128(B, c.vQA, (nb + j) * 1024)); o.append(wait_lg0())
            for a in range(2):
                C = c.NM(j) if t == 0 else c.S(a, j)
                o.append(mfma(c.S(a, j), c.Fq[4 + a], B, C))
            if t not in c.Rsteps: o.append(nop(7))
        o.append(nop(7))
    o += [nop(7)]
    mx = [V(84 + j) for j in range(r)]; tm = [V(90 + j) for j in range(r)]
    o += rowmax(c, mx)
    o += xlane(c, mx, tm, 'v_max_f32')
    for j in range(r): o.append(valu('v_max_f32', mx[j], 0, mx[j]))
    for j in range(r): o.append(valu('v_sub_f32', tm[j], 0, mx[j]))
    for j in range(r): o.append(valu('v_exp_f32', tm[j], tm[j]))
    o.append(nop(0))
    for j in range(r):
        for e in range(4): o.append(valu('v_sub_f32', c.NM(j).sub(e), c.NM(j).sub(e), mx[j]))
        Lo = c.L((p - 1) & 1, j)
        o.append(valu('v_mul_f32', Lo, Lo, tm[j]))
        for T in range(16):
            O = c.O(T, j)
            for e in range(4):
                if O.k == 'a':
                    o.append(valu('v_accvgpr_read_b32', vo, O.sub(e)))
                    o.append(valu('v_mul_f32', vo, vo, tm[j]))
                    o.append(valu('v_accvgpr_write_b32', O.sub(e), vo))
                else: o.append(valu('v_mul_f32', O.sub(e), O.sub(e), tm[j]))
    o += exp_block(c, p, mx, True)
    o.append(nop(1))
    o.append(raw(f's_branch {name}_ret', 'branch'))
    return o

def x_dma(c, sigma):
    nb = 2 * c.r
    o = [salu('s_mov_b32', 'm0', sMX), salu('s_mov_b32', sXso, sXs)]
    o[0].wr = [('m0', 0)]
    for b in range(nb):
        d = dma(c.vXD, sSRD_X, sXso, 0, tag=('X', sigma), slot=f'X{sigma&1}'); d.meta['private'] = True
        o.append(d)
        if b < nb - 1:
            x = salu('s_add_u32', 'm0', 'm0', 1024, wrx=['scc']); x.wr = [('m0', 0), ('scc', 0)]; o.append(x)
            o.append(salu('s_add_u32', sXso, sXso, 7168, wrx=['scc']))
    o.append(salu('s_add_u32', sXs, sXs, 128, wrx=['scc']))
    o.append(salu('s_xor_b32', sMX, sMX, sXtog, wrx=['scc']))
    return o

def w_dma(c, kappa, slotreg):
    o = [salu('s_add_u32', 'm0', slotreg, sW4)]; o[0].wr = [('m0', 0), ('scc', 0)]
    seq = [dma(c.vWD, sSRD_W, sC[tp], tp * 1024, nt=c.ntw, tag=('W', kappa), slot=f'W{kappa%3}') for tp in range(4)]
    adv = [pair(salu('s_add_u32', sSRD_W.sub(0), sSRD_W.sub(0), 262144, wrx=['scc']),
                salu('s_addc_u32', sSRD_W.sub(1), sSRD_W.sub(1), 0, rdx=['scc'], wrx=['scc']))]
    return o, seq, adv

def w_reads(c, kappa, t):
    par = kappa & 1
    out = []
    for s_ in range(2):
        buf = c.Fq[2 * (t % 4) + s_]
        for u in range(2):
            out.append(ds_readtr(buf.sub(2 * u, 2), c.vWc[par][t & 1], u * 8192 + (t >> 1) * 1024 + 8 * s_, tag=(f'W{kappa%3}', ('W', kappa))))
    return out

def x_reads(c, kappa):
    par = kappa & 1
    return [ds_read128(c.XF(par, j), c.vXc[par], j * 2048, tag=(f'X{(kappa>>1)&1}', ('X', kappa >> 1))) for j in range(c.r)]

def next_addr(c, kappa, slotreg):
    par = kappa & 1
    o = [valu('v_add_u32', c.vWc[par][0], slotreg, c.vWA[0]), valu('v_add_u32', c.vWc[par][1], slotreg, c.vWA[1])]
    if par == 0:
        o.append(valu('v_add_u32', c.vXc[0], sXoff, c.vXA[0]))
        o.append(valu('v_add_u32', c.vXc[1], sXoff, c.vXA[1]))
        o.append(salu('s_xor_b32', sXoff, sXoff, XSLOT, wrx=['scc']))
    return o

sSRD_WS, sSRD_WD = S(44, 4), S(48, 4)
def wo_dma(c):
    o = []
    for b in range(7):
        if b in (0, 4):
            m = salu('s_add_u32', 'm0', sWoL, 0 if b == 0 else 4096); m.wr = [('m0', 0), ('scc', 0)]
            o += [m, nop(0)]
        d = dma(V(160 + b), sSRD_WS, 0, (b & 3) * 1024, nt=True, tag=('Wo', 0), slot='Wo'); d.meta['private'] = True
        o.append(d)
    return o
def wo_pack_fillers(c, g0, gm, g1):
    w = F(wait_vmt(('Wo', 0)), g0, g0, prio=8)
    fs = [w]
    mid = F(wait_lg(*[V(132 + 4 * nu, 4) for nu in range(4)]), (g0 + gm) * 5 // 8, (g0 + gm) * 5 // 8 + 1, prio=8)
    rd = []
    for nu in range(7):
        for s_ in range(2):
            x = ds_readtr(V(132 + 4 * nu + 2 * s_, 2), V(167), s_ * 3584 + 32 * nu, tag=('Wo', ('Wo', 0)))
            g = g0 + (len(rd) * (gm - 2 - g0)) // 14
            f = F(x, g + (1 if len(rd) == 12 else 0), g + 3, deps=[w], prio=2); rd.append(f)
    fs += rd
    mid.deps += rd[:8]; fs.append(mid)
    w2 = F(wait_lg(*[V(132 + 4 * nu, 4) for nu in range(7)]), gm, gm, deps=rd, prio=8)
    fs.append(w2)
    prev = w2
    for nu in range(7):
        src = V(132 + 4 * nu, 4)
        so = 0 if nu < 4 else sC4096
        x = I(f'buffer_store_dwordx4 {src}, {V(168)}, {sSRD_WD}, {so} offen offset:{(nu & 3) * 1024}{PACKFLAG}', 'vstore',
              [src, V(168), sSRD_WD] + ([so] if nu >= 4 else []), [], wide=True, data=src.regs())
        g = gm + 1 + (nu * (g1 - gm - 2)) // 7
        f = F(x, g, g + 2, deps=[prev], prio=3); fs.append(f); prev = f
    return fs

def qproj_step(c, kappa, pack=False, stage_wo=False):
    r = c.r
    par = kappa & 1
    mf = []
    for T in range(16):
        buf = c.Fq[2 * ((T >> 1) % 4) + (T & 1)]
        for j in range(r): mf.append(mfma(c.O(T, j), buf, c.XF(par, j), c.O(T, j)))
    n = len(mf); ps = lambda k: 2 * k * r
    fl = []; waits = {}
    for k in range(8):
        g = ps(k) - 1
        regs = [c.Fq[2 * (k % 4)], c.Fq[2 * (k % 4) + 1]]
        if k == 0: regs += [c.XF(par, j) for j in range(r)]
        waits[k] = F(wait_lg(*regs), g, g, prio=9)
    for k in range(2, 8):
        lo = ps(k - 2)
        for m, x in enumerate(w_reads(c, kappa, k)):
            f = F(x, lo, lo + 1 + m, prio=5); fl.append(f); waits[k].deps.append(f)
    fl += list(waits.values())
    nb = 2 * r
    newer = 0
    lastd = None
    has_x = par == 0 and (kappa >> 1) + 1 <= 6
    ndma = 4 + (nb if has_x else 0)
    g0, g1 = 3, ps(6) - 2
    gaps = [g0 + (k * (g1 - g0)) // (ndma - 1) for k in range(ndma)]
    m0w = None
    if kappa + 2 <= 13:
        o, sq, adv = w_dma(c, kappa + 2, sWr[2])
        fs = spread(o, sq, adv, gaps[:4]); fl += fs; newer = 4; lastd = fs[4]; m0w = fs[0]
    if kappa == 13:
        g8 = [g0 + (k * (g1 - g0)) // 7 for k in range(8)]
        o, sq, adv = dma_tile(c, sSRD_K, (sKr[0], sW4), ('K', 0), 'K0', c.vD, c.nt, 16384)
        fs = spread(o, sq, adv, g8[:4]); fl += fs; lastd = fs[4]
        o, sq, adv = dma_tile(c, sSRD_V, sMV[0], ('V', 0), 'V0', c.vD, c.nt, 16384)
        fs = spread(o, sq, adv, g8[4:], lastd); fl += fs; lastd = fs[4]
    if has_x:
        xs = x_dma(c, (kappa >> 1) + 1)
        prev = lastd; k = 4
        for x in xs:
            if x.k == 'dma': f = F(x, gaps[k], gaps[k] + 2, deps=[prev], prio=4); k += 1
            else:
                gk = gaps[min(k, ndma - 1)]
                f = F(x, gk - 3, gk + 1, deps=[prev], prio=3)
            fl.append(f); prev = f
        newer += nb; lastd = prev
    if pack: fl += wo_pack_fillers(c, 2, ps(6), n - 2)
    if stage_wo:
        prev = lastd; ws_ = [x for x in wo_dma(c) if x.k != 'nop']; k = 0
        for x in ws_:
            g = 28 + 5 * k if r == 5 else 22 + 4 * k
            if x.k == 'dma': f = F(x, g, g + 2, deps=[prev], prio=4); k += 1
            else: f = F(x, g - 2, g - 1, deps=[prev], prio=5)
            fl.append(f); prev = f
    g7 = ps(7) - 1
    if kappa < 13:
        na = chain(next_addr(c, kappa + 1, sWr[1]), ps(4), ps(6) + 2)
        fl += na
        rt = chain(rotate3(sWr, sT0), ps(6) + 3, ps(7) + 6, na[-1]); rt[0].deps += [m0w] if m0w else []; fl += rt
        need = [('W', kappa + 1)] + ([('X', (kappa + 1) >> 1)] if par == 1 else [])
        fa = F(wait_vmt(*need), g7, g7, deps=[waits[7]], prio=7)
        fb = F(barrier(), g7, g7, deps=[fa], prio=7)
        fl += [fa, fb]
        for k in range(2):
            for m, x in enumerate(w_reads(c, kappa + 1, k)):
                fl.append(F(x, g7, g7 + 1 + 2 * k + m // 2, deps=[fb, na[-1]], prio=6))
        for m, x in enumerate(x_reads(c, kappa + 1)):
            fl.append(F(x, g7, min(n - 2, g7 + 4 + m), deps=[fb, na[-1]], prio=4))
    else:
        fb = F(barrier(), g7, g7, deps=[waits[7]], prio=7)
        fl.append(fb)
        o, sq, adv = dma_tile(c, sSRD_K, (sKr[1], sW4), ('K', 1), 'K1', c.vD, c.nt, 16384)
        fs = chain(o + [nop(0)] + sq + adv, g7, n - 1, fb); fs[0].deps.append(lastd); fl += fs
    out, over = weave(mf, fl, name=f'qp{kappa}')
    return out

def q_convert(c):
    r = c.r
    o = [nop(7)]
    for j in range(r):
        for e in range(4): o.append(valu('v_mov_b32', c.NM(j).sub(e), 0))
    Z = c.NM(0)
    tq = [V(40 + i) for i in range(8)]
    tf = [V(48, 4), V(52, 4)]
    nw = 0
    for t in range(8):
        for j in range(r):
            for s_ in range(2):
                O = c.O(2 * t + s_, j)
                for e in range(4):
                    if O.k == 'a':
                        o.append(valu('v_accvgpr_read_b32', tq[4 * s_ + e], O.sub(e)))
                for e in range(4):
                    src = tq[4 * s_ + e] if O.k == 'a' else O.sub(e)
                    o.append(valu('v_mul_f32', tq[4 * s_ + e], sCs, src))
            dst = c.Qr(t, j) if t in c.Rsteps else tf[nw & 1]
            for e in range(4): o.append(valu('v_cvt_pk_bf16_f32', dst.sub(e), tq[2 * e], tq[2 * e + 1]))
            if t not in c.Rsteps:
                n = c.Lsteps.index(t) * r + j
                o.append(ds_write128(c.vQA, dst, n * 1024)); nw += 1
        for s_ in range(2):
            T = 2 * t + s_
            o.append(mfma32(A(T * 16, 16), Z, Z, 0))
        if r == 5 and (t & 1):
            o.append(mfma32(V(192 + 16 * (t >> 1), 16), Z, Z, 0))
    o.append(wait_lg0())
    return o

def epilogue(c):
    r = c.r
    par = 31 & 1
    Ls = [c.L(par, j) for j in range(r)]
    tm = [V(40 + j) for j in range(r)]
    o = [nop(7)]
    o += xlane(c, Ls, tm, 'v_add_f32')
    for j in range(r): o.append(valu('v_rcp_f32', Ls[j], Ls[j]))
    vo = c.tmp[0]
    o.append(valu('v_mbcnt_lo_u32_b32', vo, -1, 0))
    o.append(valu('v_mbcnt_hi_u32_b32', vo, -1, vo))
    o.append(valu('v_lshlrev_b32', vo, 4, vo))
    o.append(salu('s_mul_i32', sT0, sW, 5 * 8192))
    o.append(valu('v_add_u32', vo, sT0, vo))
    tq = [V(48 + i) for i in range(8)]
    fr = [V(56 + 4 * i, 4) for i in range(4)]
    n = 0
    for j in range(r):
        for tp in range(8):
            for s_ in range(2):
                O = c.O(2 * tp + s_, j)
                for e in range(4):
                    if O.k == 'a': o.append(valu('v_accvgpr_read_b32', tq[4 * s_ + e], O.sub(e)))
                for e in range(4):
                    src = tq[4 * s_ + e] if O.k == 'a' else O.sub(e)
                    o.append(valu('v_mul_f32', tq[4 * s_ + e], Ls[j], src))
            dst = fr[n % 4]; n += 1
            for e in range(4): o.append(valu('v_cvt_pk_bf16_f32', dst.sub(e), tq[2 * e], tq[2 * e + 1]))
            if (tp & 3) == 0: o.append(salu('s_mov_b32', sT1, j * 8192 + (tp >> 2) * 4096))
            o.append(I(f'buffer_store_dwordx4 {dst}, {vo}, {sSRD_O}, {sT1} offen offset:{(tp&3)*1024}{OFLAG}', 'vstore',
                       [dst, vo, sSRD_O, sT1], [], wide=True, data=dst.regs()))
    return o

FUSED = False
PACKFLAG = ''
STAMPS = False
NOCHECK = False
OFLAG = ''
def stamp(n, real=False):
    if not STAMPS: return []
    op = 's_memrealtime' if real else 's_memtime'
    return [raw(f'{op} s[82:83]'), I('s_waitcnt lgkmcnt(0)', 'wait', raw=True), raw(f's_mov_b32 s{84+n}, s82')]
FINE = None
_fine_n = [0]
def fstamp(c, tag):
    if FINE is None or tag not in FINE: return []
    reg = 'v191' if c.r == 5 else 'v119'
    return [raw('s_memtime s[82:83]'), I('s_waitcnt lgkmcnt(0)', 'wait', raw=True), raw('s_lshl_b64 exec, 1, s100'),
            raw(f'v_mov_b32 {reg}, s82', 'valu'), raw('s_mov_b64 exec, -1'), raw('s_add_u32 s100, s100, 1'), nop(3)]
def stamp_store(c):
    if not STAMPS: return []
    o = [raw('s_load_dwordx2 s[82:83], s[0:1], 96'), I('s_waitcnt lgkmcnt(0)', 'wait', raw=True)]
    o.append(raw('s_lshl_b32 s65, s2, 2')); o.append(raw('s_add_u32 s65, s65, s27')); o.append(raw('s_lshl_b32 s65, s65, 6'))
    o.append(raw('s_add_u32 s65, s65, 0x3000000'))
    o.append(raw('s_add_u32 s82, s82, s65')); o.append(raw('s_addc_u32 s83, s83, 0'))
    o.append(raw('v_mov_b32 v8, 0', 'valu'))
    for n in range(16):
        o.append(raw(f'v_mov_b32 v{12+n}, s{84+n}', 'valu'))
    for n in range(4):
        o.append(raw(f'global_store_dwordx4 v8, v[{12+4*n}:{15+4*n}], s[82:83] offset:{16*n}', 'vstore'))
    if FINE is not None:
        reg = 'v191' if c.r == 5 else 'v119'
        o.append(raw('s_lshl_b32 s65, s2, 2')); o.append(raw('s_add_u32 s65, s65, s27')); o.append(raw('s_lshl_b32 s65, s65, 8'))
        o.append(raw('s_add_u32 s65, s65, 0x3200000'))
        o.append(raw('s_load_dwordx2 s[82:83], s[0:1], 96')); o.append(I('s_waitcnt lgkmcnt(0)', 'wait', raw=True))
        o.append(raw('s_add_u32 s82, s82, s65')); o.append(raw('s_addc_u32 s83, s83, 0'))
        o.append(raw('v_mbcnt_lo_u32_b32 v8, -1, 0', 'valu')); o.append(raw('v_mbcnt_hi_u32_b32 v8, -1, v8', 'valu'))
        o.append(raw('v_lshlrev_b32 v8, 2, v8', 'valu'))
        o.append(raw(f'global_store_dword v8, {reg}, s[82:83]', 'vstore'))
    return o

def build_variant(c):
    _fine_n[0] = 0
    nm = c.name
    prog = []; trace = []
    def sec(name, ins, emit=True):
        set_keys(name, ins)
        trace.extend(ins)
        if emit: prog.extend(ins)
        return ins
    r = c.r
    pre = stamp(0, True) + stamp(1) + ([raw('s_mov_b32 s100, 0')] if FINE else [])
    pre += x_dma(c, 0)
    for kk in range(2):
        o_, sq_, adv_ = w_dma(c, kk, sWr[kk]); pre += o_ + [nop(0)] + sq_ + adv_

    for T in range(16):
        for j in range(r):
            O = c.O(T, j)
            for e in range(4):
                pre.append(valu('v_accvgpr_write_b32', O.sub(e), 0) if O.k == 'a' else valu('v_mov_b32', O.sub(e), 0))
    pre += next_addr(c, 0, sWr[0])
    pre += [wait_vmt(('W', 0), ('X', 0)), barrier()]
    pre += stamp(2)
    pre += w_reads(c, 0, 0) + w_reads(c, 0, 1) + x_reads(c, 0)
    pre.append(salu('s_mov_b32', sCnt, 5))
    sec('pre', pre)
    sec('qp0', fstamp(c, 'qp') + qproj_step(c, 0) + fstamp(c, 'qp') + qproj_step(c, 1, stage_wo=True))
    lq = f'L_qp_{nm}'
    for sg in range(1, 6):
        body = []
        if sg == 1: body.append(label(lq))
        body += fstamp(c, 'qp') + qproj_step(c, 2 * sg) + fstamp(c, 'qp') + qproj_step(c, 2 * sg + 1)
        body += [salu('s_sub_u32', sCnt, sCnt, 1, wrx=['scc']), salu('s_cmp_lg_u32', None, sCnt, 0, wrx=['scc']),
                 raw(f's_cbranch_scc1 {lq}', 'branch')]
        if sg != 1: body.insert(0, label(lq))
        sec('qploop', body, emit=(sg == 1))
    sec('qp6', fstamp(c, 'qp') + qproj_step(c, 12, pack=True) + fstamp(c, 'qp') + qproj_step(c, 13) + fstamp(c, 'qp'))
    sec('conv', stamp(3) + q_convert(c) + stamp(4))
    p0 = [wait_vmt(('K', 0)), barrier()] + k_reads(c, 0, 0) + k_reads(c, 0, 1)
    p0 += qk_phase(c, 0, first=True, issue_v=False, issue_k=True, kadv=16384, vm_a=8, pre_v=False)
    p0 += stamp(5) + init_softmax(c) + stamp(6)
    if FUSED:
        import gen3
        p0 += gen3.setup_scalars(c) + gen3.clear_counter(c, V(90), V(91))
        p0 += [wait_vm(0), barrier()] + gen3.arrive_all(c, V(90), V(91)) + k_reads(c, 1, 0) + k_reads(c, 1, 1)
    else:
        p0 += [wait_vmt(('K', 1)), barrier()] + k_reads(c, 1, 0) + k_reads(c, 1, 1)
    p0 += [salu('s_mov_b32', sCnt, 15), salu('s_mov_b32', sKoff, 0)]
    sec('p0', p0)
    la = f'L_att_{nm}'
    for trip in range(15):
        p = 1 + 2 * trip
        body = [label(la)]
        body += [salu('s_cmp_eq_u32', None, sCnt, 1, wrx=['scc']), salu('s_cselect_b32', sInc, 0, 16384, rdx=['scc'])]
        body += fstamp(c, 'att') + qk_phase(c, p, kadv=sInc) + fstamp(c, 'att')
        body += pv_phase(c, p - 1, sm=p, bar_b=8, k_next=p + 1, sp_label=f'L_sp1_{nm}')
        body += fstamp(c, 'att') + qk_phase(c, p + 1, kadv=sInc) + fstamp(c, 'att')
        body += pv_phase(c, p, sm=p + 1, bar_b=8, k_next=p + 2, sp_label=f'L_sp0_{nm}')
        body += [salu('s_sub_u32', sCnt, sCnt, 1, wrx=['scc']), salu('s_cmp_lg_u32', None, sCnt, 0, wrx=['scc']),
                 raw(f's_cbranch_scc1 {la}', 'branch')]
        sec('attloop', body, emit=(trip == 0))
    if FUSED:
        tail = stamp(7) + gen3.load_all(c) + qk_phase(c, 31, issue_k=False, vm_a=8)
        tail += pv_phase(c, 30, sm=31, bar_b=0, v_next=31, sp_label=f'L_sp2_{nm}', pre_bar=gen3.check_all(c))
        tail += [valu('v_mbcnt_lo_u32_b32', gen3.vW, -1, 0), valu('v_mbcnt_hi_u32_b32', gen3.vW, -1, gen3.vW), valu('v_lshlrev_b32', gen3.vW, 4, gen3.vW)]
        tail += pv_phase(c, 31, groups=GV_FINAL, final=True, wpre=gen3.w_preload_fillers)
        sec('tail', tail)
        sec('epi', stamp(8) + gen3.phase_e(c) + stamp(9) + gen3.group_sync(c) + stamp(10))
        prog.append(raw('s_cmp_eq_u32 s74, 3')); prog.append(raw('s_cbranch_scc1 L_gvar_m4', 'branch')); prog.append(raw('s_branch L_gvar_m5', 'branch'))
    else:
        tail = stamp(7) + qk_phase(c, 31, issue_k=False, vm_a=8)
        tail += pv_phase(c, 30, sm=31, bar_b=0, v_next=31, sp_label=f'L_sp2_{nm}')
        tail += pv_phase(c, 31, groups=GV_FINAL, final=True)
        sec('tail', tail)
        sec('epi', stamp(8) + epilogue(c) + stamp(9) + [wait_vm(0)] + stamp(10) + stamp(11, True) + stamp_store(c))
        prog.append(raw('s_endpgm', 'branch'))
    if 'nobar' in EXP:
        for x in trace:
            if x.k == 'barrier' and x.key[0] == 'attloop': x.t = 's_nop 0'
    resolve_waits(trace)
    errs = check_trace(trace, nm) if not EXP else []
    sps = []
    for name, p in ((f'L_sp1_{nm}', 1), (f'L_sp0_{nm}', 2), (f'L_sp2_{nm}', 31)):
        sp = slow_path(c, p, name)
        set_keys(name, sp)
        errs += check_trace(sp, name)
        sps += sp
    return prog, sps, trace, errs
```

```python
from core import *

WOP = 0x2900000
EXP = set()
sSRD_O, sSRD_W, sSRD_Y = S(4, 4), S(8, 4), S(12, 4)
sW = S(16); sM0 = S(17); sOo = S(18); sWo = S(19); sCnt = S(20); sT0 = S(21); sT1 = S(22); sKs = S(23); sBig = S(24); sWo2 = S(25)

NST = 4
class Cfg2:
    def __init__(s, rm, ntw=False, nto=False):
        s.rm = rm; s.name = f'm{rm}'; s.ntw = ntw; s.nto = nto
        s.vO = [V(0 + j) for j in range(5)]
        s.vW = V(5)
        s.OF = lambda st, j: V(16 + (st * 5 + j) * 4, 4)
        s.WF = lambda st, nu: A(140 + (st * 7 + nu) * 4, 4)
        s.acc = lambda j, nu: A((j * 7 + nu) * 4, 4)
        s.tmp = [V(96 + i) for i in range(8)]

def group_issue(c, ks):
    st = ks % NST
    o = []
    fw = ' nt' if c.ntw else ''; fo = ' nt' if c.nto else ''
    ws_, os_ = [], []
    for nu in range(7):
        dst = c.WF(st, nu)
        so = sWo if nu < 4 else sWo2
        ws_.append(I(f'buffer_load_dwordx4 {dst}, {c.vW}, {sSRD_W}, {so} offen offset:{(nu & 3) * 1024}{fw}', 'vload', [c.vW, sSRD_W, so], [dst]))
    for j in range(c.rm):
        dst = c.OF(st, j)
        os_.append(I(f'buffer_load_dwordx4 {dst}, {c.vO[j]}, {sSRD_O}, {sOo} offen{fo}', 'vload', [c.vO[j], sSRD_O, sOo], [dst]))
    if 'now' in EXP: ws_ = []
    if 'noo' in EXP: os_ = []
    o += ws_ + os_
    o.append(salu('s_add_u32', sWo, sWo, 28 * 1024, wrx=['scc']))
    o.append(salu('s_add_u32', sWo2, sWo2, 28 * 1024, wrx=['scc']))
    o.append(salu('s_add_u32', sKs, sKs, 1, wrx=['scc']))
    o.append(pair(salu('s_and_b32', sT0, sKs, 7, wrx=['scc']), salu('s_cmp_eq_u32', None, sT0, 0, wrx=['scc']),
                  salu('s_cselect_b32', sT0, sBig, 1024, rdx=['scc'])))
    o.append(salu('s_add_u32', sOo, sOo, sT0, wrx=['scc']))
    return o

def step(c, ks, last=31):
    rm = c.rm; st = ks % NST
    mf = []
    for nu in range(7):
        for j in range(rm):
            mf.append(mfma(c.acc(j, nu), c.WF(st, nu), c.OF(st, j), c.acc(j, nu)))
    n = len(mf)
    fl = []
    regs = [c.WF(st, nu) for nu in range(7)] + [c.OF(st, j) for j in range(rm)]
    pre = [wait_vmt(regs=regs)]
    if ks + NST - 1 <= last:
        seq = group_issue(c, ks + NST - 1)
        nd = max(1, sum(1 for x in seq if x.k == 'vload'))
        prev = None; k = 0
        for x in seq:
            g = (k * (n - 3)) // nd
            if x.k == 'vload': f = F(x, g, min(n - 1, g + 1), deps=[prev] if prev else [], prio=4); k += 1
            else: f = F(x, n - 4, n - 1, deps=[prev] if prev else [], prio=3)
            fl.append(f); prev = f
    out, over = weave(mf, fl, pre=pre, name=f'k2step{ks}')
    return out

def epilogue2(c):
    rm = c.rm
    nq = rm * 7
    o = [nop(7), barrier()]
    va = c.tmp[0]; vl = c.tmp[1]
    o.append(valu('v_mbcnt_lo_u32_b32', vl, -1, 0))
    o.append(valu('v_mbcnt_hi_u32_b32', vl, -1, vl))
    o.append(valu('v_lshlrev_b32', va, 4, vl))
    o.append(salu('s_mul_i32', sT0, sW, 35840))
    o.append(valu('v_add_u32', c.tmp[2], sT0, va))
    for q in range(nq):
        j, nu = q // 7, q % 7
        o.append(I(f'ds_write_b128 {c.tmp[2]}, {c.acc(j, nu)} offset:{q*1024}', 'dsw', [c.tmp[2], c.acc(j, nu)], []))
    o += [wait_lg0(), barrier()]
    vi = c.tmp[3]; vg = c.tmp[4]; vy = c.tmp[5]
    o.append(valu('v_and_b32', vi, 15, vl)); o.append(valu('v_lshrrev_b32', vg, 4, vl))
    o.append(valu('v_mul_u32_u24', vi, 1792, vi)); o.append(valu('v_lshlrev_b32', vg, 3, vg))
    o.append(valu('v_add_u32', vy, vi, vg))
    per = (nq + 3) // 4
    o.append(salu('s_lshl_b32', sT0, sW, 10))
    o.append(valu('v_add_u32', va, sT0, va))
    bufs = [[V(16 + (u * 4 + p_) * 4, 4) for p_ in range(4)] for u in range(2)]
    vad = [V(104), V(105)]
    for n in range(per):
        u = n & 1
        lab = f'L_k2skip_{c.name}_{n}'
        guard = (4 * n + 3 >= nq)
        o.append(salu('s_add_u32', sT1, sW, 4 * n, wrx=['scc']))
        if guard:
            o.append(salu('s_cmp_ge_u32', None, sT1, nq, wrx=['scc']))
            o.append(raw(f's_cbranch_scc1 {lab}', 'branch'))
        for p_ in range(4):
            o.append(ds_read128(bufs[u][p_], va, n * 4096 + p_ * 35840 if n * 4096 + p_ * 35840 < 65536 else 0))
            if n * 4096 + p_ * 35840 >= 65536:
                o.pop()
                o.append(valu('v_add_u32', vad[0], p_ * 35840, va))
                o.append(ds_read128(bufs[u][p_], vad[0], n * 4096))
        o.append(salu('s_mul_i32', sT0, sT1, 37, ))
        o.append(salu('s_lshr_b32', sT0, sT0, 8, wrx=['scc']))
        o.append(salu('s_mul_i32', sKs, sT0, 7))
        o.append(salu('s_sub_u32', sKs, sT1, sKs, wrx=['scc']))
        o.append(salu('s_mul_i32', sT0, sT0, 16 * 1792))
        o.append(salu('s_lshl_b32', sKs, sKs, 5, wrx=['scc']))
        o.append(salu('s_add_u32', sT0, sT0, sKs, wrx=['scc']))
        o.append(wait_lg0())
        b0, b1, b2, b3 = bufs[u]
        for e in range(4): o.append(valu('v_add_f32', b0.sub(e), b0.sub(e), b1.sub(e)))
        for e in range(4): o.append(valu('v_add_f32', b2.sub(e), b2.sub(e), b3.sub(e)))
        for e in range(4): o.append(valu('v_add_f32', b0.sub(e), b0.sub(e), b2.sub(e)))
        o.append(valu('v_cvt_pk_bf16_f32', b1.sub(0), b0.sub(0), b0.sub(1)))
        o.append(valu('v_cvt_pk_bf16_f32', b1.sub(1), b0.sub(2), b0.sub(3)))
        o.append(I(f'buffer_store_dwordx2 {b1.sub(0, 2)}, {vy}, {sSRD_Y}, {sT0} offen', 'vstore', [b1.sub(0, 2), vy, sSRD_Y, sT0], []))
        if guard: o.append(label(lab))
    return o

STAMPS = False
def stamp(n, real=False):
    if not STAMPS: return []
    op = 's_memrealtime' if real else 's_memtime'
    return [raw(f'{op} s[82:83]'), I('s_waitcnt lgkmcnt(0)', 'wait', raw=True), raw(f's_mov_b32 s{84+n}, s82')]
def stamp_store():
    if not STAMPS: return []
    o = [raw('s_load_dwordx2 s[82:83], s[0:1], 96'), I('s_waitcnt lgkmcnt(0)', 'wait', raw=True)]
    o.append(raw('s_lshl_b32 s65, s2, 2')); o.append(raw('s_add_u32 s65, s65, s16')); o.append(raw('s_lshl_b32 s65, s65, 6'))
    o.append(raw('s_add_u32 s65, s65, 0x3100000'))
    o.append(raw('s_add_u32 s82, s82, s65')); o.append(raw('s_addc_u32 s83, s83, 0'))
    o.append(raw('v_mov_b32 v8, 0', 'valu'))
    for n in range(16):
        o.append(raw(f'v_mov_b32 v{12+n}, s{84+n}', 'valu'))
    for n in range(4):
        o.append(raw(f'global_store_dwordx4 v8, v[{12+4*n}:{15+4*n}], s[82:83] offset:{16*n}', 'vstore'))
    return o

def build_variant2(c):
    nm = c.name
    prog = []; trace = []
    def sec(name, ins, emit=True):
        set_keys(name, ins); trace.extend(ins)
        if emit: prog.extend(ins)
    pre = stamp(0, True) + stamp(1)
    for ks in range(NST - 1): pre += group_issue(c, ks)
    for j in range(c.rm):
        for nu in range(7):
            for e in range(4): pre.append(valu('v_accvgpr_write_b32', c.acc(j, nu).sub(e), 0))
    pre += stamp(2)
    pre.append(salu('s_mov_b32', sCnt, 7))
    sec('pre', pre)
    lab = f'L_k2_{nm}'
    for trip in range(7):
        body = [label(lab)]
        for u in range(4): body += step(c, 4 * trip + u)
        body += [salu('s_sub_u32', sCnt, sCnt, 1, wrx=['scc']), salu('s_cmp_lg_u32', None, sCnt, 0, wrx=['scc']),
                 raw(f's_cbranch_scc1 {lab}', 'branch')]
        sec('loop', body, emit=(trip == 0))
    tail = stamp(3)
    for ks in range(28, 32): tail += step(c, ks)
    sec('tail', tail)
    sec('epi', stamp(4) + epilogue2(c) + stamp(5) + [wait_vm(0)] + stamp(6) + stamp(7, True) + stamp_store())
    prog.append(raw('s_endpgm', 'branch'))
    resolve_waits(trace)
    errs = check_trace(trace, nm) if not EXP else []
    return prog, trace, errs

def k2_setup():
    o = []
    t = lambda s: o.append(s)
    t('s_cmp_ge_u32 s2, 256')
    t('s_cbranch_scc1 L_k2_end')
    t('s_load_dwordx2 s[44:45], s[0:1], 80')
    t('s_load_dwordx2 s[46:47], s[0:1], 96')
    t('v_lshrrev_b32 v100, 6, v0')
    t('v_and_b32 v101, 63, v0')
    t('v_readfirstlane_b32 s16, v100')
    t('s_and_b32 s50, s2, 7'); t('s_lshr_b32 s51, s2, 3')
    t('s_lshr_b32 s52, s50, 2')
    t('s_and_b32 s53, s50, 3'); t('s_lshl_b32 s53, s53, 1'); t('s_lshr_b32 s54, s51, 4'); t('s_add_u32 s53, s53, s54')
    t('s_lshr_b32 s54, s51, 2'); t('s_and_b32 s54, s54, 3')
    t('s_and_b32 s55, s51, 3')
    t('s_waitcnt lgkmcnt(0)')
    t('s_lshl_b32 s56, s52, 3'); t('s_add_u32 s56, s56, s53'); t('s_lshl_b32 s56, s56, 4')
    t('s_lshl_b32 s57, s16, 2'); t('s_add_u32 s56, s56, s57'); t('s_mul_i32 s56, s56, 163840')
    t('s_mul_i32 s57, s54, 40960'); t('s_add_u32 s56, s56, s57')
    t('s_add_u32 s4, s46, s56'); t('s_addc_u32 s5, s47, 0')
    t(f's_mov_b32 s6, {4*163840}'); t('s_mov_b32 s7, 0x20000')
    t('s_lshl_b32 s56, s52, 7'); t('s_lshl_b32 s57, s16, 5'); t('s_add_u32 s56, s56, s57'); t('s_mul_i32 s56, s56, 28')
    t('s_mul_i32 s57, s55, 7'); t('s_add_u32 s56, s56, s57'); t('s_lshl_b32 s56, s56, 10'); t(f's_add_u32 s56, s56, {WOP}')
    t('s_add_u32 s8, s46, s56'); t('s_addc_u32 s9, s47, 0')
    t(f's_mov_b32 s10, {32*28*1024}'); t('s_mov_b32 s11, 0x20000')
    t(f's_mul_i32 s56, s53, {304*1792}'); t(f's_mul_i32 s57, s54, {80*1792}'); t('s_add_u32 s56, s56, s57')
    t('s_mul_i32 s57, s52, 896'); t('s_add_u32 s56, s56, s57'); t('s_mul_i32 s57, s55, 224'); t('s_add_u32 s56, s56, s57')
    t('s_add_u32 s12, s44, s56'); t('s_addc_u32 s13, s45, 0')
    t(f's_sub_u32 s14, {8*304*1792}, s56'); t('s_mov_b32 s15, 0x20000')
    t('s_mov_b32 s18, 0'); t('s_mov_b32 s19, 0'); t('s_mov_b32 s23, 0'); t(f's_mov_b32 s24, {163840 - 7*1024}'); t('s_mov_b32 s25, 4096')
    t('v_lshlrev_b32 v0, 4, v101')
    for j in range(1, 5): t(f'v_add_u32 v{j}, {j*8192}, v0')
    t('v_mov_b32 v5, v0')
    t('s_cmp_eq_u32 s54, 3')
    t('s_cbranch_scc1 L_k2var_m4')
    return o
```

```python
from core import *
import gen1
from gen1 import sW, sT0, sT1, sSRD_O, xlane

WOP = 0x2900000
CNT = 0x3400000
XFLAG = ' sc0 sc1'
LFLAG = ' sc1'
gSRD_O, gSRD_W, gSRD_Y = S(12, 4), S(16, 4), S(44, 4)
sOo, sWo, sWo2, sKs, sBig, sCntG, sTa, sTb = [S(52 + i) for i in range(8)]
sMb = S(74); sCntA = S(76, 2); sDbg = S(78, 2)
NW = 8; NOF = 4
WQ = [V(40 + 4 * i, 4) for i in range(10)] + [V(100 + 4 * i, 4) for i in range(4)] + [V(130 + 4 * i, 4) for i in range(14)] \
     + [A(144 + 4 * i, 4) for i in range(28)]
OQ = [V(192 + 4 * i, 4) for i in range(16)] + [V(8 + 4 * i, 4) for i in range(4)]
vO = [V(j) for j in range(5)]
vW = V(6)
def WF(st, nu): return WQ[st * 7 + nu]
def OF(st, j): return OQ[st * 5 + j]
def acc(j, nu): return A((j * 7 + nu) * 4, 4)

def w_loads(ks):
    st = ks % NW
    o = []
    for nu in range(7):
        dst = WF(st, nu); so = sWo if nu < 4 else sWo2
        o.append(I(f'buffer_load_dwordx4 {dst}, {vW}, {gSRD_W}, {so} offen offset:{(nu & 3) * 1024}{LFLAG}', 'vload', [vW, gSRD_W, so], [dst]))
    o.append(salu('s_add_u32', sWo, sWo, 28 * 1024, wrx=['scc']))
    o.append(salu('s_add_u32', sWo2, sWo2, 28 * 1024, wrx=['scc']))
    return o

def o_loads(rm, ks):
    st = ks % NOF
    o = []
    for j in range(rm):
        dst = OF(st, j)
        o.append(I(f'buffer_load_dwordx4 {dst}, {vO[j]}, {gSRD_O}, {sOo} offen{LFLAG}', 'vload', [vO[j], gSRD_O, sOo], [dst]))
    o.append(salu('s_add_u32', sKs, sKs, 1, wrx=['scc']))
    o.append(pair(salu('s_and_b32', sTa, sKs, 7, wrx=['scc']), salu('s_cmp_eq_u32', None, sTa, 0, wrx=['scc']),
                  salu('s_cselect_b32', sTa, sBig, 1024, rdx=['scc'])))
    o.append(salu('s_add_u32', sOo, sOo, sTa, wrx=['scc']))
    return o

def setup_scalars(c):
    t = []
    r_ = lambda s: t.append(raw(s))
    r_('s_load_dwordx2 s[80:81], s[0:1], 96')
    r_('s_load_dwordx2 s[44:45], s[0:1], 80')
    r_('s_load_dwordx2 s[78:79], s[0:1], 88')
    t.append(I('s_waitcnt lgkmcnt(0)', 'wait', raw=True))
    r_('s_and_b32 s58, s2, 7'); r_('s_lshr_b32 s52, s58, 2')
    r_('s_and_b32 s53, s58, 3'); r_('s_lshl_b32 s53, s53, 1'); r_('s_lshr_b32 s58, s2, 7'); r_('s_add_u32 s53, s53, s58')
    r_('s_lshr_b32 s58, s2, 3'); r_('s_and_b32 s58, s58, 15')
    r_('s_lshr_b32 s74, s58, 2'); r_('s_and_b32 s75, s58, 3')
    r_('s_lshl_b32 s54, s52, 3'); r_('s_add_u32 s54, s54, s53')
    r_('s_lshl_b32 s58, s54, 8'); r_(f's_add_u32 s58, s58, {CNT}')
    r_('s_add_u32 s76, s80, s58'); r_('s_addc_u32 s77, s81, 0')
    r_('s_lshl_b32 s58, s54, 4'); r_('s_lshl_b32 s59, s27, 2'); r_('s_add_u32 s58, s58, s59'); r_('s_mul_i32 s58, s58, 163840')
    r_('s_mul_i32 s59, s74, 40960'); r_('s_add_u32 s58, s58, s59')
    r_('s_add_u32 s12, s80, s58'); r_('s_addc_u32 s13, s81, 0')
    r_(f's_mov_b32 s14, {4*163840}'); r_('s_mov_b32 s15, 0x20000')
    r_('s_lshl_b32 s58, s52, 7'); r_('s_lshl_b32 s59, s27, 5'); r_('s_add_u32 s58, s58, s59'); r_('s_mul_i32 s58, s58, 28')
    r_('s_mul_i32 s59, s75, 7'); r_('s_add_u32 s58, s58, s59'); r_('s_lshl_b32 s58, s58, 10'); r_(f's_add_u32 s58, s58, {WOP}')
    r_('s_add_u32 s16, s80, s58'); r_('s_addc_u32 s17, s81, 0')
    r_(f's_mov_b32 s18, {32*28*1024}'); r_('s_mov_b32 s19, 0x20000')
    r_(f's_mul_i32 s58, s53, {304*1792}'); r_(f's_mul_i32 s59, s74, {80*1792}'); r_('s_add_u32 s58, s58, s59')
    r_('s_mul_i32 s59, s52, 896'); r_('s_add_u32 s58, s58, s59'); r_('s_mul_i32 s59, s75, 224'); r_('s_add_u32 s58, s58, s59')
    r_('s_add_u32 s44, s44, s58'); r_('s_addc_u32 s45, s45, 0')
    r_(f's_sub_u32 s46, {8*304*1792}, s58'); r_('s_mov_b32 s47, 0x20000')
    r_('s_mov_b32 s52, 0'); r_('s_mov_b32 s53, 0'); r_('s_mov_b32 s54, 4096'); r_('s_mov_b32 s55, 0')
    r_(f's_mov_b32 s56, {163840 - 7*1024}')
    return t

def clear_counter(c, v0, v1):
    return [valu('v_mov_b32', v0, 0), raw('s_mov_b64 exec, 1'),
            I(f'global_store_dword {v0}, {v0}, {sCntA}{XFLAG}', 'vstore', [v0, sCntA], []),
            raw('s_mov_b64 exec, -1')]

def arrive_all(c, v0, v1):
    lab = f'L_arr_{c.name}'
    return [raw('s_cmp_lg_u32 s27, 0'), raw(f's_cbranch_scc1 {lab}', 'branch'),
            valu('v_mov_b32', v0, 0), valu('v_mov_b32', v1, 1), raw('s_mov_b64 exec, 1'),
            raw(f'global_atomic_add {v0}, {v1}, {sDbg}', 'other'), raw('s_mov_b64 exec, -1'), label(lab)]

def load_all(c):
    if c.r != 5: return []
    lab = 'L_lda'
    v = c.tmp[1]
    return [raw('s_cmp_lg_u32 s27, 0'), raw(f's_cbranch_scc1 {lab}', 'branch'),
            valu('v_mov_b32', v, 0), nop(0), raw(f'global_load_dword {v}, {v}, {sDbg}{LFLAG}', 'other'), label(lab)]

def check_all(c):
    if c.r != 5: return []
    v = c.tmp[1]
    txt = ['s_cmp_lg_u32 s27, 0', 's_cbranch_scc1 L_cka_ok', 's_mov_b32 s58, 0x8000',
           'L_cka_loop:', f'v_readfirstlane_b32 s59, {v}', 's_nop 3', 's_cmp_ge_u32 s59, 256', 's_cbranch_scc1 L_cka_ok',
           f'v_mov_b32 {v}, 0', 's_nop 0', f'global_load_dword {v}, {v}, {sDbg}{LFLAG}', 's_waitcnt vmcnt(0)',
           's_sub_u32 s58, s58, 1', 's_cmp_lg_u32 s58, 0', 's_cbranch_scc1 L_cka_loop', 'L_cka_ok:']
    return [raw('\n'.join(txt), 'salu', cost=8)]

def w_preload_fillers(c, n_gaps, dep):
    fs = []; prev = dep; k = 0
    seq = []
    for ks in range(4): seq += w_loads(ks)
    nd = sum(1 for x in seq if x.k == 'vload')
    g0 = 12
    for x in seq:
        g = g0 + (k * (n_gaps - g0 - 2)) // nd
        if x.k == 'vload': f = F(x, g, min(n_gaps - 1, g + 2), deps=[prev] if prev else [], prio=4); k += 1
        else: f = F(x, g - 1, min(n_gaps - 1, g + 2), deps=[prev] if prev else [], prio=3)
        fs.append(f); prev = f
    return fs

def phase_e(c):
    r = c.r
    Ls = [c.L(1, j) for j in range(r)]
    tm = [V(80 + j) for j in range(r)]
    rp = [V(86 + 2 * j, 2) for j in range(r)]
    o = [nop(7)]
    o += xlane(c, Ls, tm, 'v_add_f32')
    for j in range(r): o.append(valu('v_rcp_f32', Ls[j], Ls[j]))
    vo = c.tmp[0]
    o.append(salu('s_mul_i32', sT0, sW, 5 * 8192))
    o.append(valu('v_add_u32', vo, sT0, vW))
    for j in range(r):
        o.append(valu('v_mov_b32', rp[j].sub(0), Ls[j])); o.append(valu('v_mov_b32', rp[j].sub(1), Ls[j]))
    tqs = [[V(8 + 8 * u + i) for i in range(8)] for u in range(2)]
    fr = [V(24 + 4 * i, 4) for i in range(4)]
    n = 0
    wl = []
    for ks in range(4, 8): wl += w_loads(ks)
    pend = 28
    for tp in range(7, -1, -1):
        for j in range(r):
            if pend >= 58: o.append(wait_vm(44)); pend = 44
            pend += 3 if tp <= 3 else 1
            tq = tqs[n & 1]
            for s_ in range(2):
                O = c.O(2 * tp + s_, j)
                if O.k == 'a':
                    for e in range(4): o.append(valu('v_accvgpr_read_b32', tq[4 * s_ + e], O.sub(e)))
            for s_ in range(2):
                O = c.O(2 * tp + s_, j)
                for e in range(0, 4, 2):
                    dst = V(tq[4 * s_ + e].i, 2)
                    src = dst if O.k == 'a' else O.sub(e, 2)
                    o.append(valu('v_pk_mul_f32', dst, src, rp[j]))
            dst = fr[n % 4]; n += 1
            for e in range(4): o.append(valu('v_cvt_pk_bf16_f32', dst.sub(e), tq[2 * e], tq[2 * e + 1]))
            o.append(salu('s_mov_b32', sT1, j * 8192 + (tp >> 2) * 4096))
            o.append(I(f'buffer_store_dwordx4 {dst}, {vo}, {sSRD_O}, {sT1} offen offset:{(tp&3)*1024}{XFLAG}', 'vstore',
                       [dst, vo, sSRD_O, sT1], [], wide=True, data=dst.regs()))
            if tp <= 3:
                for _ in range(2):
                    while wl and wl[0].k != 'vload': o.append(wl.pop(0))
                    if wl: o.append(wl.pop(0))
    o += wl
    Z = V(8, 4)
    for e in range(4): o.append(valu('v_mov_b32', Z.sub(e), 0))
    o.append(nop(1))
    for m in range(9): o.append(mfma32(A(16 * m, 16), Z, Z, 0))
    o.append(valu('v_mov_b32', vO[0], vW))
    for j in range(1, 5): o.append(valu('v_add_u32', vO[j], j * 8192, vW))
    return o

def group_sync(c):
    nm = c.name
    v0, v1 = V(12), V(13)
    txt = ['s_cmp_lg_u32 s27, 0', f's_cbranch_scc1 L_gs_{nm}', 'v_mov_b32 v12, 0', 'v_mov_b32 v13, 1',
           's_mov_b64 exec, 1', f'global_atomic_add v12, v13, {sCntA}', 's_mov_b64 exec, -1', 's_mov_b32 s58, 0x8000',
           f'L_gp_{nm}:', f'global_load_dword v13, v12, {sCntA}{LFLAG}', 's_waitcnt vmcnt(0)', 'v_readfirstlane_b32 s59, v13', 's_nop 3',
           's_cmp_ge_u32 s59, 16', f's_cbranch_scc1 L_gs_{nm}', 's_sub_u32 s58, s58, 1', 's_cmp_lg_u32 s58, 0',
           f's_cbranch_scc1 L_gp_{nm}', f'L_gs_{nm}:']
    return [wait_vm(0), barrier(), raw('\n'.join(txt), 'salu', wr=[v0, v1]), barrier()]

def g_step(rm, ks, last=31):
    so, sw = ks % NOF, ks % NW
    mf = [mfma(acc(j, nu), WF(sw, nu), OF(so, j), acc(j, nu)) for nu in range(7) for j in range(rm)]
    n = len(mf)
    regs = [OF(so, j) for j in range(rm)] + [WF(sw, nu) for nu in range(7)]
    pre = [wait_vmt(regs=regs)]
    seq = []
    if ks + NOF - 1 <= last: seq += o_loads(rm, ks + NOF - 1)
    if ks >= 1 and ks + NW - 1 <= last: seq += w_loads(ks + NW - 1)
    fl = []
    nd = max(1, sum(1 for x in seq if x.k == 'vload'))
    prev = None; k = 0
    for x in seq:
        g = (k * (n - 3)) // nd
        if x.k == 'vload': f = F(x, g, min(n - 1, g + 1), deps=[prev] if prev else [], prio=4); k += 1
        else: f = F(x, max(0, g - 1), n - 1, deps=[prev] if prev else [], prio=3)
        fl.append(f); prev = f
    out, over = weave(mf, fl, pre=pre, name=f'g{ks}')
    return out

def reduce_out(rm):
    nm = f'm{rm}'
    nq = rm * 7
    o = [nop(7)]
    va, vl, vb = V(0), V(1), V(2)
    o.append(valu('v_mbcnt_lo_u32_b32', vl, -1, 0))
    o.append(valu('v_mbcnt_hi_u32_b32', vl, -1, vl))
    o.append(valu('v_lshlrev_b32', va, 4, vl))
    o.append(salu('s_mul_i32', sTa, sW, 35840))
    o.append(valu('v_add_u32', vb, sTa, va))
    for q in range(nq):
        j, nu = q // 7, q % 7
        o.append(I(f'ds_write_b128 {vb}, {acc(j, nu)} offset:{q*1024}', 'dsw', [vb, acc(j, nu)], []))
    vi, vg, vy = V(3), V(4), V(5)
    o.append(valu('v_and_b32', vi, 15, vl)); o.append(valu('v_lshrrev_b32', vg, 4, vl))
    o.append(valu('v_mul_u32_u24', vi, 1792, vi)); o.append(valu('v_lshlrev_b32', vg, 3, vg))
    o.append(valu('v_add_u32', vy, vi, vg))
    o.append(salu('s_lshl_b32', sTa, sW, 10))
    o.append(valu('v_add_u32', va, sTa, va))
    vad = [va, V(6), V(7), V(8)]
    for p_ in range(1, 4): o.append(valu('v_add_u32', vad[p_], p_ * 35840, va))
    o += [wait_lg0(), barrier()]
    per = (nq + 3) // 4
    bufs = [[V(16 + (n * 4 + p_) * 4, 4) for p_ in range(4)] for n in range(per)]
    last_guard = (4 * (per - 1) + 3 >= nq)
    def rd(n):
        return [ds_read128(bufs[n][p_], vad[p_], n * 4096) for p_ in range(4)]
    for n in range(min(3, per)): o += rd(n)
    for n in range(per):
        lab = f'L_rskip_{nm}'
        guard = (n == per - 1) and last_guard
        o.append(salu('s_add_u32', sTb, sW, 4 * n, wrx=['scc']))
        o.append(salu('s_mul_i32', sTa, sTb, 37))
        o.append(salu('s_lshr_b32', sTa, sTa, 8, wrx=['scc']))
        o.append(salu('s_mul_i32', sKs, sTa, 7))
        o.append(salu('s_sub_u32', sKs, sTb, sKs, wrx=['scc']))
        o.append(salu('s_mul_i32', sTa, sTa, 16 * 1792))
        o.append(salu('s_lshl_b32', sKs, sKs, 5, wrx=['scc']))
        o.append(salu('s_add_u32', sTa, sTa, sKs, wrx=['scc']))
        o.append(wait_lg(*bufs[n]))
        if n + 3 < per: o += rd(n + 3)
        b0, b1, b2, b3 = bufs[n]
        for e in range(4): o.append(valu('v_add_f32', b0.sub(e), b0.sub(e), b1.sub(e)))
        for e in range(4): o.append(valu('v_add_f32', b2.sub(e), b2.sub(e), b3.sub(e)))
        for e in range(4): o.append(valu('v_add_f32', b0.sub(e), b0.sub(e), b2.sub(e)))
        o.append(valu('v_cvt_pk_bf16_f32', b1.sub(0), b0.sub(0), b0.sub(1)))
        o.append(valu('v_cvt_pk_bf16_f32', b1.sub(1), b0.sub(2), b0.sub(3)))
        if guard:
            o.append(salu('s_cmp_ge_u32', None, sTb, nq, wrx=['scc']))
            o.append(raw(f's_cbranch_scc1 {lab}', 'branch'))
        o.append(I(f'buffer_store_dwordx2 {b1.sub(0, 2)}, {vy}, {gSRD_Y}, {sTa} offen', 'vstore', [b1.sub(0, 2), vy, gSRD_Y, sTa], []))
        if guard: o.append(label(lab))
    return o

def build_g(rm):
    nm = f'm{rm}'
    prog = []; trace = []
    def sec(name, ins, emit=True):
        set_keys(name, ins); trace.extend(ins)
        if emit: prog.extend(ins)
    pre = gen1.stamp(11)
    for ks in range(NOF - 1): pre += o_loads(rm, ks)
    pre += g_step(rm, 0)
    pre.append(salu('s_mov_b32', sCntG, 3))
    sec('g0', pre)
    lab = f'L_g_{nm}'
    for trip in range(3):
        body = [label(lab)]
        for u in range(8): body += g_step(rm, 1 + 8 * trip + u)
        body += [salu('s_sub_u32', sCntG, sCntG, 1, wrx=['scc']), salu('s_cmp_lg_u32', None, sCntG, 0, wrx=['scc']),
                 raw(f's_cbranch_scc1 {lab}', 'branch')]
        sec('gloop', body, emit=(trip == 0))
    tail = []
    for ks in range(25, 32): tail += g_step(rm, ks)
    sec('gtail', tail)
    sec('red', gen1.stamp(12) + reduce_out(rm) + gen1.stamp(13) + ([wait_vm(0)] + gen1.stamp(14) + gen1.stamp(15, True) + gen1.stamp_store(None) if gen1.STAMPS else []))
    prog.append(raw('s_endpgm', 'branch'))
    resolve_waits(trace)
    errs = check_trace(trace, nm)
    return prog, trace, errs
```

```python
import sys
from core import *
import gen1, gen2, gen3
from gen1 import *

WOP = 0x2900000
PREFETCH = '--nopf' not in sys.argv
KN = 'concat_heads__mha_block_cached__mha_block_cached__near_ridge'

def k1_setup(c5):
    o = []
    t = lambda s: o.append(s)
    t('s_cmp_ge_u32 s2, 256')
    t('s_cbranch_scc1 L_k1_end')
    t('s_load_dwordx8 s[40:47], s[0:1], 0')
    t('s_load_dwordx8 s[48:55], s[0:1], 40')
    t('s_load_dwordx2 s[56:57], s[0:1], 96')
    t('s_load_dwordx2 s[96:97], s[0:1], 32')
    t('s_load_dwordx2 s[98:99], s[0:1], 72')
    t('v_lshrrev_b32 v100, 6, v0')
    t('v_and_b32 v101, 63, v0')
    t('v_readfirstlane_b32 s27, v100')
    if PREFETCH:
        t('s_getpc_b64 s[74:75]')
        t('L_k1_pc:')
        t('s_lshr_b32 s76, s2, 3'); t('s_lshl_b32 s76, s76, 2'); t('s_add_u32 s76, s76, s27'); t('s_lshl_b32 s76, s76, 10')
        t('s_cmp_ge_u32 s76, L_k1_hot_end - L_k1_pc - 1024')
        t('s_cbranch_scc1 L_k1_nopf')
        t('v_lshlrev_b32 v102, 4, v101'); t('v_add_u32 v102, s76, v102')
        t('global_load_dwordx4 v[184:187], v102, s[74:75]')
        t('L_k1_nopf:')
    t('s_and_b32 s82, s2, 7')
    t('s_lshr_b32 s72, s2, 3')
    t('s_lshr_b32 s73, s82, 2')
    t('s_and_b32 s74, s82, 3')
    t('s_lshl_b32 s74, s74, 1')
    t('s_lshr_b32 s75, s72, 4')
    t('s_add_u32 s74, s74, s75')
    t('s_and_b32 s75, s72, 15')
    t('s_lshl_b32 s76, s74, 4')
    t('s_add_u32 s76, s76, s75')
    t('s_lshl_b32 s77, s73, 7')
    t('s_add_u32 s77, s77, s76')
    t('s_waitcnt lgkmcnt(0)')
    t('s_cmp_eq_u32 s73, 0')
    t('s_cselect_b64 s[40:41], s[40:41], s[48:49]')
    t('s_cselect_b64 s[42:43], s[42:43], s[50:51]')
    t('s_cselect_b64 s[44:45], s[44:45], s[52:53]')
    t('s_cselect_b64 s[46:47], s[46:47], s[54:55]')
    t('s_lshl_b32 s78, s76, 19')
    t('s_add_u32 s36, s42, s78'); t('s_addc_u32 s37, s43, 0')
    t('s_sub_u32 s4, s36, 2688'); t('s_subb_u32 s5, s37, 0')
    t('s_mov_b32 s6, 19072'); t('s_mov_b32 s7, 0x20000')
    t('s_add_u32 s8, s44, s78'); t('s_addc_u32 s9, s45, 0')
    t('s_sub_u32 s8, s8, 2688'); t('s_subb_u32 s9, s9, 0')
    t('s_mov_b32 s10, 19072'); t('s_mov_b32 s11, 0x20000')
    t('s_mul_i32 s78, s74, 272384')
    t('s_add_u32 s12, s40, s78'); t('s_addc_u32 s13, s41, 0')
    t('s_mov_b32 s14, 272384'); t('s_mov_b32 s15, 0x20000')
    t('s_lshl_b32 s78, s75, 9')
    t('s_add_u32 s16, s46, s78'); t('s_addc_u32 s17, s47, 0')
    t('s_sub_u32 s16, s16, 2688'); t('s_subb_u32 s17, s17, 0')
    t('s_mov_b32 s18, 0x40000'); t('s_mov_b32 s19, 0x20000')
    t('s_mul_i32 s78, s77, 163840')
    t('s_add_u32 s20, s56, s78'); t('s_addc_u32 s21, s57, 0')
    t('s_mov_b32 s22, 163840'); t('s_mov_b32 s23, 0x20000')
    t('s_cmp_lt_u32 s2, 128'); t('s_cselect_b64 s[96:97], s[96:97], s[98:99]')
    t('s_and_b32 s78, s2, 127'); t('s_mul_i32 s78, s78, 28672'); t('s_mul_i32 s79, s27, 224'); t('s_add_u32 s78, s78, s79')
    t('s_add_u32 s44, s96, s78'); t('s_addc_u32 s45, s97, 0')
    t('s_sub_u32 s44, s44, 3072'); t('s_subb_u32 s45, s45, 0')
    t(f's_mov_b32 s46, {28672 + 3072}'); t('s_mov_b32 s47, 0x20000')
    t('s_mul_i32 s78, s2, 28672'); t('s_mul_i32 s79, s27, 7168'); t('s_add_u32 s78, s78, s79'); t(f's_add_u32 s78, s78, {WOP}')
    t('s_add_u32 s48, s56, s78'); t('s_addc_u32 s49, s57, 0')
    t('s_mov_b32 s50, 7168'); t('s_mov_b32 s51, 0x20000')
    t('s_lshr_b32 s78, s27, 1'); t('s_lshl_b32 s78, s78, 15'); t('s_and_b32 s79, s27, 1'); t('s_mul_i32 s79, s79, 7168')
    t('s_add_u32 s72, s78, s79'); t('s_mov_b32 s73, 4096')
    t('s_mov_b32 s24, 2688'); t('s_mov_b32 s25, 1792'); t('s_mov_b32 s26, 896')
    t('s_lshl_b32 s78, s27, 12')
    for reg, base in ((30, LDS_V[0]), (31, LDS_V[1])):
        t(f's_add_u32 s{reg}, s78, {base}')
    for reg, base in zip(sKr, LDS_K): t(f's_mov_b32 {reg}, {base}')
    for reg, base in zip(sWr, LDS_W): t(f's_mov_b32 {reg}, {base}')
    t('s_mul_i32 s79, s27, 10240')
    t(f's_add_u32 s64, s79, {LDS_X}')
    t(f's_add_u32 s80, s64, {XSLOT}')
    t('s_xor_b32 s70, s64, s80')
    t('s_mov_b32 s60, 0'); t('s_mov_b32 s68, 0')
    t(f's_mov_b32 s38, {THR}'); t(f's_mov_b32 s39, {CSCALE}')
    t('s_mov_b32 s34, 0')
    t('v_and_b32 v102, 15, v101')
    t('v_lshrrev_b32 v103, 4, v101')
    t('v_lshrrev_b32 v104, 3, v101')
    t('v_and_b32 v105, 7, v101')
    t('v_and_b32 v106, 6, v104')
    t('v_xor_b32 v105, v105, v106')
    t('v_lshlrev_b32 v105, 4, v105')
    t('v_lshlrev_b32 v7, 9, v104'); t('v_add_u32 v7, v7, v105'); t('v_add_u32 v7, s78, v7')
    t('s_mul_i32 s80, s27, 80')
    t('v_add_u32 v107, s80, v104'); t('v_mul_u32_u24 v107, 896, v107'); t('v_add_u32 v90, v107, v105')
    t('s_and_b32 s80, s27, 1'); t('s_lshl_b32 s80, s80, 4'); t('s_lshr_b32 s81, s27, 1'); t('s_lshl_b32 s81, s81, 2')
    t('s_add_u32 s80, s80, s81')
    t('v_lshrrev_b32 v107, 2, v104'); t('v_lshlrev_b32 v107, 3, v107'); t('v_and_b32 v108, 3, v104')
    t('v_add_u32 v107, v107, v108'); t('v_add_u32 v107, s80, v107'); t('v_lshlrev_b32 v107, 13, v107')
    t('v_add_u32 v91, v107, v105')
    t('s_mov_b32 s80, 4682')
    for b in range(7):
        t(f'v_add_u32 v108, {64*b}, v101')
        t('v_mul_lo_u32 v109, v108, s80'); t('v_lshrrev_b32 v109, 16, v109')
        t('v_mul_u32_u24 v110, 14, v109'); t('v_sub_u32 v110, v108, v110')
        t('v_mul_u32_u24 v109, 896, v109'); t('v_lshlrev_b32 v110, 4, v110'); t('v_add_u32 v109, v109, v110')
        t(f'v_add_u32 v{160+b}, {3072 - 1024*(b&3)}, v109')
    t('v_lshrrev_b32 v108, 2, v101'); t('v_mul_u32_u24 v108, 224, v108')
    t('v_and_b32 v109, 3, v101'); t('v_lshlrev_b32 v109, 3, v109'); t('v_add_u32 v108, v108, v109')
    t('v_add_u32 v167, s72, v108')
    t('v_lshlrev_b32 v168, 4, v101')
    t('v_lshrrev_b32 v107, 3, v102')
    t('v_and_b32 v108, 7, v102'); t('v_lshlrev_b32 v108, 7, v108')
    t('v_and_b32 v109, 6, v102')
    for tau in range(2):
        t(f'v_add_u32 v110, {4*tau}, v103'); t('v_xor_b32 v110, v110, v109'); t('v_lshlrev_b32 v110, 4, v110')
        t('v_add_u32 v110, v110, v108')
        t(f'v_lshlrev_b32 v111, 12, v107'); t(f'v_add_u32 v{tau}, v110, v111')
        t(f'v_lshlrev_b32 v111, 10, v107'); t(f'v_add_u32 v110, v110, v111')
        t(f'v_add_u32 v110, s79, v110'); t(f'v_add_u32 v{80+tau}, {LDS_X}, v110')
    t('v_lshrrev_b32 v107, 2, v101'); t('v_and_b32 v107, 3, v107')
    t('v_and_b32 v108, 1, v103'); t('v_lshlrev_b32 v108, 2, v108'); t('v_add_u32 v107, v107, v108')
    t('v_and_b32 v109, 6, v107')
    t('v_lshlrev_b32 v107, 7, v107')
    t('v_lshrrev_b32 v108, 1, v103'); t('v_lshlrev_b32 v108, 12, v108'); t('v_add_u32 v107, v107, v108')
    t('v_and_b32 v108, 3, v101')
    t('v_lshrrev_b32 v110, 1, v108')
    t('v_and_b32 v111, 1, v108'); t('v_lshlrev_b32 v111, 3, v111')
    for u in range(4):
        t(f'v_add_u32 v112, {2*u}, v110'); t('v_xor_b32 v112, v112, v109'); t('v_lshlrev_b32 v112, 4, v112')
        t('v_add_u32 v112, v112, v111'); t(f'v_add_u32 v{2+u}, v112, v107')
    for tau in range(2):
        t(f'v_add_u32 v112, {4*tau}, v108'); t('v_xor_b32 v112, v112, v109'); t('v_lshlrev_b32 v112, 4, v112')
        t(f'v_add_u32 v{84+tau}, v112, v107')
    t(f'v_add_u32 v0, {LDS_K[0]}, v0'); t(f'v_add_u32 v1, {LDS_K[0]}, v1')
    t('s_mov_b32 s71, s78')
    t('s_mul_i32 s80, s27, 25600'); t(f's_add_u32 s80, s80, {LDS_Q}')
    t('v_lshlrev_b32 v6, 4, v101'); t('v_add_u32 v6, s80, v6')
    t('s_cmp_eq_u32 s27, 3')
    t('s_cbranch_scc1 L_var_r4')
    return o

def emit_k1(nt=True):
    out = []
    c5, c4 = Cfg(5, nt), Cfg(4, nt)
    name = 'attn_kernel'
    out += ['.globl ' + name, '.p2align 8', f'.type {name},@function', name + ':']
    out += k1_setup(c5)
    allerr = []
    cold = []
    for c in (c5, c4):
        prog, sps, trace, errs = build_variant(c)
        allerr += errs
        if c.r == 4: out.append('L_var_r4:')
        out += [x.text() for x in prog]
        cold += [x.text() for x in sps]
    if gen1.FUSED:
        for rm in (5, 4):
            prog, trace, errs = gen3.build_g(rm)
            allerr += errs
            out.append(f'L_gvar_m{rm}:')
            out += [x.text() for x in prog]
    out += ['L_k1_end:', 's_endpgm', 'L_k1_hot_end:'] + cold
    for e in allerr[:20]: print('ERR', e, file=sys.stderr)
    assert not allerr
    return name, out

def emit_k2():
    name = 'proj_kernel'
    out = ['.globl ' + name, '.p2align 8', f'.type {name},@function', name + ':']
    out += gen2.k2_setup()
    allerr = []
    for rm in (5, 4):
        c = gen2.Cfg2(rm, ntw='--ntw2' in sys.argv, nto='--nto2' in sys.argv)
        prog, trace, errs = gen2.build_variant2(c)
        allerr += errs
        if rm == 4: out.append('L_k2var_m4:')
        out += [x.text() for x in prog]
    out += ['L_k2_end:', 's_endpgm']
    for e in allerr[:20]: print('ERR', e, file=sys.stderr)
    assert not allerr
    return name, out

def desc(name, vgpr, accum, sgpr=102):
    return ['.section .rodata,"a"', '.p2align 6', f'.amdhsa_kernel {name}',
            f'  .amdhsa_next_free_vgpr {vgpr}', f'  .amdhsa_next_free_sgpr {sgpr}', f'  .amdhsa_accum_offset {accum}',
            '  .amdhsa_group_segment_fixed_size 0', '  .amdhsa_kernarg_size 104', '  .amdhsa_user_sgpr_count 2',
            '  .amdhsa_user_sgpr_kernarg_segment_ptr 1', '  .amdhsa_system_sgpr_workgroup_id_x 1', '.end_amdhsa_kernel', '.text']

def header(launches):
    ref = open('cdna_kernels/' + KN + '.s.ref').read().split('\n')
    h = [l for l in ref if l.startswith(';') and 'offset ' in l or l.startswith('; Kernarg')]
    h += [f'; @launch kernel={n} grid=({g},1,1) block=({b},1,1) lds={lds}' for n, g, b, lds in launches]
    h += ['.amdgcn_target "amdgcn-amd-amdhsa--gfx950"', '.text']
    return h

if __name__ == '__main__':
    nt = '--no-nt' not in sys.argv
    gen1.STAMPS = gen2.STAMPS = '--stamps' in sys.argv
    for x in sys.argv:
        if x.startswith('--oflag='): gen1.OFLAG = ' ' + x[8:].replace('+', ' ')
        if x.startswith('--fine='): gen1.FINE = set(x[7:].split(','))
        if x.startswith('--exp='): gen1.EXP.update(x[6:].split(','))
        if x.startswith('--exp2='): gen2.EXP.update(x[7:].split(','))
    if '--fused' in sys.argv:
        gen1.FUSED = True; gen1.PACKFLAG = gen3.XFLAG
    name, k1 = emit_k1(nt)
    if gen1.FUSED:
        name0 = KN + '_kernel'
        k1 = [l.replace('attn_kernel', name0) for l in k1]
        hd = header([])
        hd.insert(-2, '; @launch grid=(256,1,1) block=(256,1,1) lds=163840')
        txt = hd + k1 + desc(name0, 512, 256)
        txt = [l for l in txt if l != '']
        open(sys.argv[1], 'w').write('\n'.join(txt) + '\n')
        sys.exit(0)
    if '--k1only' in sys.argv:
        txt = header([(name, 256, 256, 163840)]) + k1 + desc(name, 512, 256)
    else:
        name2, k2 = emit_k2()
        txt = header([(name, 256, 256, 163840), (name2, 256, 256, 143360)]) + k1 + k2 + desc(name, 512, 256) + desc(name2, 360, 108)
    txt = [l for l in txt if l != '']
    open(sys.argv[1], 'w').write('\n'.join(txt) + '\n')
```
